```python
import torch

def _softmax(x, axis=-1):
    return torch.softmax(x, dim=axis)
def _gelu(x):
    return torch.nn.functional.gelu(x, approximate="tanh")
def _silu(x):
    return torch.nn.functional.silu(x)
def _sigmoid(x):
    return torch.sigmoid(x)
def _layernorm(x, axis=-1, eps=1e-5):
    m = x.mean(dim=axis, keepdim=True)
    v = x.var(dim=axis, keepdim=True, unbiased=False)
    return (x - m) / torch.sqrt(v + eps)
def _scatter_add(tgt, idx, src, axis=0):
    return tgt.clone().index_add_(axis, idx, src)
def _segment_sum(src, seg, n):
    out = torch.zeros((n,) + src.shape[1:], dtype=src.dtype)
    return out.index_add_(0, seg, src)
def _pad(x, pw):
    flat = tuple(v for pair in reversed(pw) for v in pair)
    return torch.nn.functional.pad(x, flat)

kernel_name = 'concat_heads__mha_block__sliding_block__prompt'

def setup_inputs():

    _w = (lambda a: (lambda t: t.to(torch.bfloat16) if t.is_floating_point() else t)(torch.as_tensor(a)))
    def _A_setup():
        B, S, D, H = 1, 2048, 576, 32
        return {
            "x": _w((lambda *s: torch.randn(*s, dtype=torch.bfloat16) * 0.2)(B, S, D)),
            "wqkv": _w((lambda *s: torch.randn(*s, dtype=torch.bfloat16) * 0.4)(D, 3 * D)),
            "wo": _w((lambda *s: torch.randn(*s, dtype=torch.bfloat16) * 0.1)(D, D)),
        }
    _A_in = _A_setup()

    def _B_setup():
        B, S, D = 1, 2048, 576
        return {
            "x": _w((lambda *s: torch.randn(*s, dtype=torch.bfloat16) * 0.4)(B, S, D)),
            "wqkv": _w((lambda *s: torch.randn(*s, dtype=torch.bfloat16) * 0.4)(D, 3 * D)),
            "wo": _w((lambda *s: torch.randn(*s, dtype=torch.bfloat16) * 0.05)(D, D)),
        }
    _B_in = _B_setup()

    return {
        "A_x": _A_in["x"],
        "A_wqkv": _A_in["wqkv"],
        "A_wo": _A_in["wo"],
        "B_x": _B_in["x"],
        "B_wqkv": _B_in["wqkv"],
        "B_wo": _B_in["wo"],
    }

def reference(A_x, A_wqkv, A_wo, B_x, B_wqkv, B_wo):
    def _A_ref(x, wqkv, wo):
        B, S, D = x.shape
        H = 32
        Dh = D // H
        qkv = (lambda x, *d: x.permute(*d))((x @ wqkv).reshape(B, S, 3, H, Dh), 2, 0, 3, 1, 4)
        q, k, v = qkv[0], qkv[1], qkv[2]
        scores = torch.einsum("bhqd,bhkd->bhqk", q, k) * (Dh ** -0.5)
        p = _softmax(scores, axis=-1)
        o = torch.einsum("bhqk,bhkd->bhqd", p, v)
        return (lambda x, *d: x.permute(*d))(o, 0, 2, 1, 3).reshape(B, S, D) @ wo

    def _B_ref(x, wqkv, wo):
        B, S, D = x.shape
        H = 32; Dh = D // H; W = 256
        qkv = (lambda x, *d: x.permute(*d))((x @ wqkv).reshape(B, S, 3, H, Dh), 2, 0, 3, 1, 4)
        q, k, v = qkv[0], qkv[1], qkv[2]
        scores = torch.einsum("bhqd,bhkd->bhqk", q, k) * (Dh ** -0.5)
        idx = torch.arange(S)
        mask = (idx[:, None] - idx[None, :] >= 0) & (idx[:, None] - idx[None, :] < W)
        scores = torch.where(mask[None, None], scores, -1e9)
        p = _softmax(scores, axis=-1)
        o = torch.einsum("bhqk,bhkd->bhqd", p, v)
        return (lambda x, *d: x.permute(*d))(o, 0, 2, 1, 3).reshape(B, S, D) @ wo

    a = _A_ref(A_x, A_wqkv, A_wo)
    b = _B_ref(B_x, B_wqkv, B_wo)
    return torch.concatenate([a, b], axis=-1)
```

```python
class Asm:
    def __init__(self):
        self.lines = []
        self.vm = []
        self.uid = 0
    def __call__(self, s):
        for l in s.split("\n"):
            l = l.strip()
            if l:
                self.lines.append("    " + l if not l.endswith(":") else l)
    def label(self, name):
        self.lines.append(name + ":")
    def newlabel(self, base):
        self.uid += 1
        return f"{base}_{self.uid}"
    def vmem(self, s, tag):
        self(s)
        self.vm.append(tag)
    def wait_vm(self, tag, extra=""):
        idx = max(i for i, t in enumerate(self.vm) if t == tag)
        n = len(self.vm) - 1 - idx
        n = min(n, 63)
        self(f"s_waitcnt vmcnt({n}) {extra}".strip())
    def vm_reset(self):
        self.vm = []
    def nop(self, n):
        while n > 0:
            k = min(n, 16)
            self(f"s_nop {k-1}")
            n -= k
    def text(self):
        return "\n".join(self.lines) + "\n"

def vr(base, n=1):
    return f"v{base}" if n == 1 else f"v[{base}:{base+n-1}]"
def sr(base, n=1):
    return f"s{base}" if n == 1 else f"s[{base}:{base+n-1}]"

DIAG_OFF = 0x1800000
def diag_start(a):
    a("s_memrealtime s[88:89]")
    a("s_memtime s[90:91]")
def diag_mark(a, k):
    a(f"s_memtime s[{82+2*k}:{83+2*k}]")
def diag_end(a, kidx, sWave, ws_lo, vtmp, waves=4):
    a("s_memrealtime s[92:93]")
    a("s_memtime s[94:95]")
    a("s_waitcnt lgkmcnt(0)")
    a(f"s_mul_i32 s96, s2, {waves}")
    a(f"s_add_u32 s96, s96, s{sWave}")
    a("s_lshl_b32 s96, s96, 6")
    a(f"s_add_u32 s96, s96, {DIAG_OFF + kidx * 0x100000}")
    a(f"s_add_u32 s98, s{ws_lo}, s96")
    a(f"s_addc_u32 s99, s{ws_lo+1}, 0")
    order = [88, 89, 90, 91, 92, 93, 94, 95, 82, 83, 84, 85, 86, 87, 2, sWave]
    for i, s in enumerate(order):
        a(f"v_mov_b32 v{vtmp+i}, s{s}")
    a(f"v_mov_b32 v{vtmp+16}, 0")
    for q in range(4):
        a(f"global_store_dwordx4 v{vtmp+16}, v[{vtmp+4*q}:{vtmp+4*q+3}], s[98:99] offset:{16*q}")
```

```python
import re, sys
TRANS = ("v_exp_", "v_log_", "v_rcp_", "v_rsq_", "v_sqrt_", "v_sin_", "v_cos_")
def regs(tok):
    tok = tok.strip().strip("|").lstrip("-").strip("|")
    m = re.fullmatch(r"([vsa])\[(\d+):(\d+)\]", tok)
    if m: return {(m.group(1), i) for i in range(int(m.group(2)), int(m.group(3)) + 1)}
    m = re.fullmatch(r"([vsa])(\d+)", tok)
    if m: return {(m.group(1), int(m.group(2)))}
    if tok == "vcc": return {("vcc", 0)}
    if tok == "m0": return {("m0", 0)}
    if tok == "exec": return {("exec", 0)}
    return set()
def parse(line):
    l = line.split(";")[0].strip()
    if not l or l.endswith(":") or l.startswith("."): return None
    p = l.split(None, 1)
    mn = p[0]
    ops = []
    if len(p) > 1:
        rest = p[1]
        ops = [o.strip() for o in re.split(r",(?![^\[]*\])", rest)]
        if ops:
            last = ops[-1].split()
            ops[-1] = last[0]
            mods = last[1:]
        else: mods = []
    else: mods = []
    d = dict(mn=mn, ops=ops, mods=mods, w=set(), r=set())
    if mn.startswith("v_mfma"):
        d["kind"] = "mfma"; d["w"] = regs(ops[0]); d["a"] = regs(ops[1]) | regs(ops[2]); d["c"] = regs(ops[3]); d["r"] = d["a"] | d["c"]
        d["passes"] = 8 if "32x32" in mn else 4
    elif mn.startswith("v_"):
        d["kind"] = "valu"
        if "permlane" in mn and "swap" in mn:
            d["w"] = regs(ops[0]) | regs(ops[1]); d["r"] = set(d["w"])
        else:
            d["w"] = regs(ops[0])
            for o in ops[1:]: d["r"] |= regs(o)
            if mn.startswith("v_cndmask") and len(ops) == 3: d["r"] |= {("vcc", 0)}
            if mn.startswith("v_cmp") and not regs(ops[0]): pass
            if mn.startswith(("v_fmac", "v_pk_fmac")) : d["r"] |= d["w"]
    elif mn.startswith(("buffer_", "global_")):
        d["kind"] = "vmem"
        lds = "lds" in mods or any(m == "lds" for m in l.split())
        d["lds"] = lds
        store = "store" in mn or "atomic" in mn
        allr = set()
        for o in ops: allr |= regs(o)
        if store: d["r"] = allr; d["data"] = regs(ops[0]) if mn.startswith("buffer_") else regs(ops[1]); d["wide"] = mn.endswith(("x3", "x4"))
        elif lds: d["r"] = allr
        else:
            d["w"] = regs(ops[0]); d["r"] = set()
            for o in ops[1:]: d["r"] |= regs(o)
        for tok in l.split():
            d["r"] |= regs(tok.strip(",")) if tok.strip(",").startswith("s") and not store and tok.strip(",") not in ops[:1] else set()
    elif mn.startswith("ds_"):
        d["kind"] = "ds"
        if "read" in mn:
            d["w"] = regs(ops[0]); d["r"] = set().union(*[regs(o) for o in ops[1:]])
        else: d["r"] = set().union(*[regs(o) for o in ops])
    elif mn.startswith("s_"):
        d["kind"] = "salu"
        if mn == "s_nop": d["nop"] = int(ops[0]) + 1
        elif ops and not mn.startswith(("s_cmp", "s_waitcnt", "s_cbranch", "s_branch", "s_barrier", "s_setprio", "s_endpgm")):
            d["w"] = regs(ops[0])
            for o in ops[1:]: d["r"] |= regs(o)
    else: d["kind"] = "other"
    return d
def need(prev, cur):
    n = 0
    pk, ck = prev["kind"], cur["kind"]
    sg = lambda s: {x for x in s if x[0] in ("s", "vcc")}
    vg = lambda s: {x for x in s if x[0] in ("v", "a")}
    if pk == "valu":
        if ck in ("valu", "mfma") and sg(prev["w"]) & sg(cur["r"]): n = max(n, 2)
        if ck == "valu" and "permlane" in cur["mn"] and vg(prev["w"]) & vg(cur["r"]): n = max(n, 2)
        if ck == "valu" and cur["mn"].startswith(("v_readfirstlane", "v_readlane")) and vg(prev["w"]) & vg(cur["r"]): n = max(n, 1)
        if ck == "valu" and prev["mn"].startswith(TRANS) and vg(prev["w"]) & vg(cur["r"]): n = max(n, 1)
        if ck == "mfma" and vg(prev["w"]) & vg(cur["r"]): n = max(n, 2)
        if ck == "vmem" and sg(prev["w"]) & sg(cur["r"]): n = max(n, 5)
    if pk == "salu" and ck == "vmem" and cur.get("lds") and ("m0", 0) in prev["w"]: n = max(n, 1)
    if pk == "mfma":
        big = 12 if prev["passes"] == 8 else 8
        if ck in ("valu", "vmem", "ds") and prev["w"] & (cur["r"] | cur["w"]): n = max(n, big)
        if ck == "mfma":
            if prev["w"] & cur["a"]: n = max(n, big)
            elif prev["w"] & cur["c"] and prev["w"] != cur["c"]: n = max(n, big)
            elif prev["w"] & cur["c"] and prev["passes"] != cur["passes"]: n = max(n, big)
    if pk == "vmem" and prev.get("wide") and ck == "valu" and prev["data"] & cur["w"]: n = max(n, 2)
    return n
def fix(text, insert=True, report=True):
    out = []; hist = []; bad = 0
    for line in text.split("\n"):
        d = parse(line)
        if d is None:
            out.append(line); continue
        if "nop" in d:
            hist.append(("nop", d["nop"])); out.append(line); continue
        gap = 0; req = 0
        for h in reversed(hist):
            if h[0] == "nop": gap += h[1]
            else:
                r = need(h[1], d) - gap
                if r > req: req = r; who = h[2]
                gap += 1
            if gap >= 14: break
        if req > 0:
            bad += 1
            if report: print(f"hazard: +{req} before `{line.strip()}` (after `{who.strip()}`)", file=sys.stderr)
            if insert:
                k = req
                while k > 0:
                    q = min(k, 16); out.append(f"    s_nop {q-1}"); hist.append(("nop", q)); k -= q
        hist.append(("i", d, line))
        if len(hist) > 40: hist = hist[-30:]
        out.append(line)
    return "\n".join(out), bad
if __name__ == "__main__":
    t, n = fix(open(sys.argv[1]).read(), insert=False)
    print("hazards:", n)
```

```python
from asm import *
from layout import *

NS = 6
STG = 22528
R_X = 14336
NCH = 18
OOB = 0x80000000

ACC = 0
FX = [112, 156]
FW = [128, 172]
AW, AR, AX = 200, 206, 209
VQ, VK, VV, VR, VSC = 212, 213, 214, 215, 216
T = 220
sW, sBr, sMt, sNg = 3, 12, 13, 14
sA, sB, sC = 15, 16, 17
sX, sWq = 20, 24

def acc(n, tt): return ACC + (n * 4 + tt) * 4

def pi16(a, dst, src, tmp):
    a(f"v_and_b32 v{tmp}, 4, v{src}")
    a(f"v_and_b32 v{dst}, 0xfffffff3, v{src}")
    a(f"v_lshl_or_b32 v{dst}, v{tmp}, 1, v{dst}")
    a(f"v_and_b32 v{tmp}, 8, v{src}")
    a(f"v_lshrrev_b32 v{tmp}, 1, v{tmp}")
    a(f"v_or_b32 v{dst}, v{dst}, v{tmp}")

import os
EXP = os.environ.get('K1EXP','')
WROW = 432
def gen_loader(a, hi):
    nW = 3 if hi else 4
    VM = [1, 2, 3, 4]; VX = [6, 7]
    t = 10
    a("v_and_b32 v0, 63, v0")
    a(f"s_sub_u32 s{sW}, s{sW}, 4")
    a(f"v_lshrrev_b32 v{t}, 2, v0")
    a(f"s_lshl_b32 s{sB}, s{sMt}, 7")
    a(f"s_lshl_b32 s{sC}, s{sW}, 5")
    a(f"s_add_u32 s{sB}, s{sB}, s{sC}")
    a(f"v_add_u32 v{t}, s{sB}, v{t}")
    a(f"v_mul_u32_u24 v{t}, 1152, v{t}")
    a(f"v_bfe_u32 v{t+1}, v0, 5, 1")
    a(f"v_mul_u32_u24 v{t+1}, 3, v{t+1}")
    a(f"v_and_b32 v{t+2}, 3, v0")
    a(f"v_xor_b32 v{t+1}, v{t+1}, v{t+2}")
    a(f"v_lshl_add_u32 v{VX[0]}, v{t+1}, 4, v{t}")
    a(f"v_add_u32 v{VX[1]}, {16*1152}, v{VX[0]}")
    a(f"s_mul_i32 s{sA}, s{sNg}, 144")
    for q in range(nW):
        a(f"s_lshl_b32 s{sB}, s{sW}, 6")
        a(f"s_add_u32 s{sB}, s{sB}, {256*q}")
        a(f"v_add_u32 v{t}, s{sB}, v0")
        a(f"v_mul_u32_u24 v{t+1}, 2428, v{t}")
        a(f"v_lshrrev_b32 v{t+1}, 16, v{t+1}")
        a(f"v_mul_u32_u24 v{t+2}, 27, v{t+1}")
        a(f"v_sub_u32 v{t+2}, v{t}, v{t+2}")
        a(f"v_mul_u32_u24 v{t+3}, 29, v{t+2}")
        a(f"v_lshrrev_b32 v{t+3}, 8, v{t+3}")
        a(f"v_mul_u32_u24 v{t+4}, {1152 - 144}, v{t+3}")
        a(f"v_lshl_add_u32 v{t+4}, v{t+2}, 4, v{t+4}")
        a(f"v_and_b32 v{t+5}, 24, v{t+1}")
        a(f"v_bfe_u32 v{t+6}, v{t+1}, 1, 2")
        a(f"v_and_b32 v{t+7}, 1, v{t+1}")
        a(f"v_lshl_add_u32 v{t+6}, v{t+7}, 2, v{t+6}")
        a(f"v_add_u32 v{t+5}, v{t+5}, v{t+6}")
        a(f"v_mul_u32_u24 v{t+5}, 3456, v{t+5}")
        a(f"v_add3_u32 v{VM[q]}, v{t+5}, v{t+4}, s{sA}")
        if q == 3:
            a(f"v_bfrev_b32 v{t+7}, 1")
            a(f"v_cmp_gt_u32 vcc, 864, v{t}")
            a(f"v_cndmask_b32 v{VM[q]}, v{t+7}, v{VM[q]}, vcc")
    sM = [30, 31, 32, 33]; sXd = [35, 36]
    a(f"s_lshl_b32 s{sB}, s{sW}, 10")
    for q in range(nW): a(f"s_add_u32 s{sM[q]}, s{sB}, {4096*q}")
    a(f"s_lshl_b32 s{sB}, s{sW}, 11")
    for q in range(2): a(f"s_add_u32 s{sXd[q]}, s{sB}, {R_X + 1024*q}")
    sKW, sKX = 37, 38
    a("s_waitcnt lgkmcnt(0)")
    select_ptrs(a)
    def issue(c):
        st = (c % NS) * STG
        a(f"s_mov_b32 s{sKW}, {c * 32 * 3456}")
        a(f"s_mov_b32 s{sKX}, {c * 64}")
        for q in range(2):
            a(f"s_add_u32 m0, s{sXd[q]}, {st}")
            a("s_nop 0")
            a.vmem(f"buffer_load_dwordx4 v{VX[q]}, s[{sX}:{sX+3}], s{sKX} offen lds", f"c{c}")
        for q in range(nW):
            a(f"s_add_u32 m0, s{sM[q]}, {st}")
            a("s_nop 0")
            a.vmem(f"buffer_load_dwordx4 v{VM[q]}, s[{sWq}:{sWq+3}], s{sKW} offen lds", f"c{c}")
    a.vm_reset()
    PD = int(os.environ.get('K1PD', '3'))
    nxt = 0
    while nxt < PD: issue(nxt); nxt += 1
    for b in range(NCH):
        a.wait_vm(f"c{b}"); a("s_barrier")
        lim = min(NCH, b + NS)
        k = 0
        while nxt < lim and k < 2: issue(nxt); nxt += 1; k += 1
    a("s_endpgm")

def select_ptrs(a):
    a(f"s_cmp_eq_u32 s{sBr}, 0")
    a(f"s_cselect_b32 s{sX}, s4, s8")
    a(f"s_cselect_b32 s{sX+1}, s5, s9")
    a(f"s_cselect_b32 s{sWq}, s6, s10")
    a(f"s_cselect_b32 s{sWq+1}, s7, s11")
    a(f"s_and_b32 s{sX+1}, s{sX+1}, 0xffff")
    a(f"s_and_b32 s{sWq+1}, s{sWq+1}, 0xffff")
    a(f"s_mov_b32 s{sX+2}, {S*D*2}")
    a(f"s_mov_b32 s{sX+3}, 0x00020000")
    a(f"s_mov_b32 s{sWq+2}, {D*3*D*2}")
    a(f"s_mov_b32 s{sWq+3}, 0x00020000")

def gen_consumer(a, nw, diag):
    t = T
    L = 217
    a(f"v_and_b32 v{L}, 63, v0")
    a(f"s_and_b32 s{sC}, s{sW}, 1")
    a(f"v_lshrrev_b32 v{t}, 4, v{L}")
    a(f"v_bfe_u32 v{t+1}, v{L}, 2, 2")
    a(f"v_and_b32 v{t+2}, 3, v{L}")
    a(f"v_and_b32 v{t+5}, 1, v{t}")
    a(f"v_lshrrev_b32 v{t+4}, 1, v{t}")
    a(f"v_lshlrev_b32 v{t+3}, 1, v{t+1}")
    a(f"v_lshl_add_u32 v{t+3}, v{t+5}, 3, v{t+3}")
    a(f"v_lshl_add_u32 v{t+3}, v{t+4}, 4, v{t+3}")
    a(f"v_mul_u32_u24 v{t+6}, {WROW}, v{t+3}")
    a(f"v_lshl_add_u32 v{AW}, v{t+2}, 3, v{t+6}")
    if nw: a(f"v_add_u32 v{AW}, 72, v{AW}")
    a(f"v_and_b32 v{t+7}, 1, v{t+2}")
    a(f"v_mul_u32_u24 v{t+7}, 72, v{t+7}")
    if nw == 0:
        a(f"v_lshrrev_b32 v{t+4}, 1, v{t+2}")
        a(f"v_mul_u32_u24 v{t+4}, 144, v{t+4}")
        a(f"v_add3_u32 v{AR}, v{t+6}, v{t+7}, v{t+4}")
        a(f"v_add_u32 v{AR}, 32, v{AR}")
    else:
        a(f"v_add_u32 v{AR}, v{t+6}, v{t+7}")
        a(f"v_add_u32 v{AR}, {288 + 32}, v{AR}")
    a(f"v_and_b32 v{t+6}, 15, v{L}")
    a(f"v_bfe_u32 v{t+7}, v{L}, 3, 1")
    a(f"v_mul_u32_u24 v{t+7}, 3, v{t+7}")
    a(f"v_xor_b32 v{t+7}, v{t+7}, v{t}")
    a(f"v_lshlrev_b32 v{t+7}, 4, v{t+7}")
    a(f"v_lshl_add_u32 v{t+7}, v{t+6}, 6, v{t+7}")
    a(f"s_lshl_b32 s{sA}, s{sC}, 12")
    a(f"s_add_u32 s{sA}, s{sA}, {R_X}")
    a(f"v_add_u32 v{AX}, s{sA}, v{t+7}")
    for base in (AW, AR, AX):
        a(f"v_add_u32 v{base+1}, {2*STG}, v{base}")
        a(f"v_add_u32 v{base+2}, {4*STG}, v{base}")
    a(f"v_lshlrev_b32 v{VQ}, 4, v{L}")
    pi16(a, t + 8, L, t + 9)
    a(f"v_lshlrev_b32 v{VK}, 4, v{t+8}")
    a(f"v_and_b32 v{t+9}, 1, v{t}")
    a(f"v_lshrrev_b32 v{t+10}, 1, v{t}")
    a(f"v_lshl_add_u32 v{t+9}, v{t+9}, 1, v{t+10}")
    a(f"v_mul_u32_u24 v{t+9}, {VT_CHUNK}, v{t+9}")
    a(f"v_lshl_add_u32 v{VV}, v{t+6}, 4, v{t+9}")
    if nw == 0:
        a(f"v_and_b32 v{t+10}, 15, v{t+8}")
        a(f"v_cmp_gt_u32 vcc, 32, v{L}")
        a(f"v_cndmask_b32 v{t+10}, v{t+10}, v{t+6}, vcc")
        a(f"v_and_b32 v{t+11}, 1, v{t}")
        a(f"v_lshlrev_b32 v{t+11}, 14, v{t+11}")
        a(f"v_lshl_add_u32 v{t+11}, v{t+10}, 2, v{t+11}")
        a(f"v_add_u32 v{t+10}, {KR_OFF - QR_OFF}, v{t+11}")
        a(f"v_cndmask_b32 v{VR}, v{t+10}, v{t+11}, vcc")
        a(f"s_mov_b32 s{sA}, {f2u(QSCALE):#x}")
        a(f"v_mov_b32 v{t+10}, s{sA}")
        a(f"v_cndmask_b32 v{VSC}, 1.0, v{t+10}, vcc")
    else:
        a(f"v_lshrrev_b32 v{t+10}, 1, v{t+6}")
        a(f"v_and_b32 v{t+11}, 1, v{t+6}")
        a(f"v_and_b32 v{t+12}, 2, v{t+6}")
        a(f"v_cmp_eq_u32 vcc, 0, v{t+12}")
        a(f"v_add_u32 v{t+12}, 16, v{t+11}")
        a("s_nop 0")
        a(f"v_cndmask_b32 v{t+11}, v{t+11}, v{t+12}, vcc")
        a(f"v_subrev_u32 v{t+12}, 8, v{t+6}")
        a(f"v_cmp_gt_u32 vcc, 8, v{t+6}")
        a("s_nop 1")
        a(f"v_cndmask_b32 v{t+10}, v{t+12}, v{t+10}, vcc")
        a(f"v_cndmask_b32 v{t+11}, 18, v{t+11}, vcc")
        a(f"s_mov_b32 s{sA}, {VT_HEAD}")
        a(f"v_mul_lo_u32 v{t+10}, v{t+10}, s{sA}")
        a(f"v_lshl_add_u32 v{t+10}, v{t+11}, 4, v{t+10}")
        a(f"v_add_u32 v{t+10}, v{t+10}, v{t+9}")
        a(f"v_bfrev_b32 v{t+11}, 1")
        a(f"v_cmp_gt_u32 s[40:41], 12, v{t+6}")
        a(f"v_cndmask_b32 v{VR}, v{t+11}, v{t+10}, s[40:41]")
        a("s_mov_b64 s[42:43], vcc")
    sQ, sK, sV, sR0, sR1 = 44, 45, 46, 47, 48
    a(f"s_lshl_b32 s{sA}, s{sNg}, 2")
    a(f"s_add_u32 s{sA}, s{sA}, {2*nw}")
    a(f"s_lshl_b32 s{sB}, s{sMt}, 1")
    a(f"s_add_u32 s{sB}, s{sB}, s{sC}")
    a(f"s_lshl_b32 s{sQ}, s{sA}, 16")
    a(f"s_lshl_b32 s{sK}, s{sB}, 11")
    a(f"s_add_u32 s{sQ}, s{sQ}, s{sK}")
    a(f"s_lshl_b32 s{sK}, s{sBr}, 21")
    a(f"s_add_u32 s{sQ}, s{sQ}, s{sK}")
    a(f"s_add_u32 s{sK}, s{sQ}, {KM_OFF}")
    a(f"s_mul_i32 s{sV}, s{sA}, {VT_HEAD}")
    a(f"s_mul_i32 s{sR0}, s{sB}, {8*VT_CHUNK}")
    a(f"s_add_u32 s{sV}, s{sV}, s{sR0}")
    a(f"s_mul_i32 s{sR0}, s{sBr}, {VT_BR}")
    a(f"s_add_u32 s{sV}, s{sV}, s{sR0}")
    a(f"s_add_u32 s{sV}, s{sV}, {VT_OFF}")
    if nw == 0:
        a(f"s_lshl_b32 s{sR0}, s{sA}, 13")
        a(f"s_lshl_b32 s{sR1}, s{sB}, 8")
        a(f"s_add_u32 s{sR0}, s{sR0}, s{sR1}")
        a(f"s_lshl_b32 s{sR1}, s{sBr}, 18")
        a(f"s_add_u32 s{sR0}, s{sR0}, s{sR1}")
        a(f"s_add_u32 s{sR0}, s{sR0}, {QR_OFF}")
        a(f"s_add_u32 s{sR1}, s{sR0}, {R_HEAD}")
    else:
        a(f"s_sub_u32 s{sR0}, s{sV}, {2*VT_HEAD}")
    sQ1, sK1, sV1 = 49, 50, 51
    a(f"s_add_u32 s{sQ1}, s{sQ}, {M_HEAD}")
    a(f"s_add_u32 s{sK1}, s{sK}, {M_HEAD}")
    a(f"s_add_u32 s{sV1}, s{sV}, {VT_HEAD}")
    a(f"s_mov_b32 s52, {f2u(QSCALE):#x}")
    a(f"s_mov_b32 s53, {f2u(QSCALE):#x}")
    a("s_load_dwordx2 s[20:21], s[0:1], 64")
    def reads(c):
        buf = c % 2; st = c % NS
        sset, so = st // 2, (st % 2) * STG
        out = []
        xs = [f"ds_read_b128 {vr(FX[buf]+4*tt,4)}, v{AX+sset} offset:{so + tt*1024}" for tt in range(4)]
        ws = []
        for n in range(7):
            for rd in range(2):
                d = FW[buf] + 4*n + 2*rd
                if n < 6:
                    ws.append(f"ds_read_b64_tr_b16 {vr(d,2)}, v{AW+sset} offset:{so + (n//2)*144 + (n%2)*40 + rd*WROW}")
                else:
                    ws.append(f"ds_read_b64_tr_b16 {vr(d,2)}, v{AR+sset} offset:{so + rd*WROW}")
        return xs[:1] + ws[:2] + xs[1:] + ws[2:]
    def mfmas(c):
        buf = c % 2
        out = []
        for n in range(7):
            for tt in range(4):
                w = vr(FW[buf] + 4*n, 4); x = vr(FX[buf] + 4*tt, 4)
                dt = (n < 4) or (n == 6 and nw == 0)
                A, B = (w, x) if dt else (x, w)
                cc = "0" if c == 0 else vr(acc(n, tt), 4)
                out.append(f"v_mfma_f32_16x16x32_bf16 {vr(acc(n,tt),4)}, {A}, {B}, {cc}")
        return out
    a("s_barrier")
    if diag: diag_mark(a, 0)
    for r in reads(0): a(r)
    for c in range(NCH):
        m = mfmas(c)
        a("s_waitcnt lgkmcnt(0)")
        if c + 1 < NCH:
            rd = reads(c + 1)
            for i in range(2): a(m[i])
            a("s_barrier")
            k = 0
            for i in range(2, 28):
                a(m[i])
                if k < len(rd): a(rd[k]); k += 1
        else:
            for x in m: a(x)
    if diag: diag_mark(a, 1)
    a("s_and_b32 s21, s21, 0xffff")
    a(f"s_mov_b32 s22, {WS_USED}")
    a("s_mov_b32 s23, 0x00020000")
    a.nop(6)
    tb = [T, T + 4, T + 8, T + 12]
    cnt = [0]
    def pack_pair(n, tt, scale):
        A = acc(n, tt); B = acc(n, tt + 1)
        d = tb[cnt[0] % 4]; cnt[0] += 1
        if scale:
            for r in (A, A + 2, B, B + 2):
                a(f"v_pk_mul_f32 {vr(r,2)}, {vr(r,2)}, s[52:53]")
        a(f"v_cvt_pk_bf16_f32 v{d}, v{A}, v{A+1}")
        a(f"v_cvt_pk_bf16_f32 v{d+1}, v{A+2}, v{A+3}")
        a(f"v_cvt_pk_bf16_f32 v{d+2}, v{B}, v{B+1}")
        a(f"v_cvt_pk_bf16_f32 v{d+3}, v{B+2}, v{B+3}")
        return d
    def swap(d):
        a.nop(2)
        a(f"v_permlane16_swap_b32 v{d}, v{d+2}")
        a(f"v_permlane16_swap_b32 v{d+1}, v{d+3}")
    for n in range(6):
        tau, jj = n // 2, n % 2
        for tt in (0, 2):
            d = pack_pair(n, tt, tau == 0)
            swap(d)
            if tau < 2:
                base = [[sQ, sQ1], [sK, sK1]][tau][jj]
                a(f"buffer_store_dwordx4 {vr(d,4)}, v{[VQ, VK][tau]}, s[20:23], s{base} offen offset:{(tt//2)*1024}")
            else:
                a(f"buffer_store_dwordx4 {vr(d,4)}, v{VV}, s[20:23], s{[sV, sV1][jj]} offen offset:{tt*2*VT_CHUNK + 32*jj}")
    if nw == 0:
        for tt in range(4):
            A = acc(6, tt)
            d = tb[cnt[0] % 4]; cnt[0] += 1
            for r in range(4):
                a(f"v_mul_f32 v{A+r}, v{A+r}, v{VSC}")
            a(f"v_cvt_pk_bf16_f32 v{d}, v{A}, v{A+1}")
            a(f"v_cvt_pk_bf16_f32 v{d+1}, v{A+2}, v{A+3}")
            a(f"buffer_store_dword v{d}, v{VR}, s[20:23], s{sR0} offen offset:{tt*64}")
            a(f"buffer_store_dword v{d+1}, v{VR}, s[20:23], s{sR1} offen offset:{tt*64}")
    else:
        a(f"v_mov_b32 v{FX[0]}, 0x3f803f80")
        for tt in (0, 2):
            d = pack_pair(6, tt, False)
            for r in range(4):
                a(f"v_cndmask_b32 v{d+r}, v{FX[0]}, v{d+r}, s[42:43]")
            swap(d)
            a(f"buffer_store_dwordx4 {vr(d,4)}, v{VR}, s[20:23], s{sR0} offen offset:{tt*2*VT_CHUNK}")
    if diag:
        diag_mark(a, 2)
        a("s_waitcnt vmcnt(0)")
        a("s_mov_b32 s4, s20"); a("s_mov_b32 s5, s21")
        diag_end(a, 0, sW, 4, 16, waves=8)
    a("s_endpgm")

import struct
def f2u(x): return struct.unpack("<I", struct.pack("<f", x))[0]

def gen_k1(name="qkv_kernel", diag=False):
    a = Asm()
    a(f".p2align 8\n.type {name},@function")
    a.label(name)
    a("s_cmp_ge_u32 s2, 256")
    a("s_cbranch_scc1 K1_END")
    if diag: diag_start(a)
    a("s_load_dwordx4 s[4:7], s[0:1], 0")
    a("s_load_dwordx4 s[8:11], s[0:1], 24")
    a("v_lshrrev_b32 v1, 6, v0")
    a(f"s_bfe_u32 s{sBr}, s2, 0x10002")
    a(f"v_readfirstlane_b32 s{sW}, v1")
    a(f"s_and_b32 s{sA}, s2, 1")
    a(f"s_bfe_u32 s{sB}, s2, 0x10001")
    a(f"s_bfe_u32 s{sMt}, s2, 0x30003")
    a(f"s_lshl_b32 s{sA}, s{sA}, 3")
    a(f"s_or_b32 s{sMt}, s{sMt}, s{sA}")
    a(f"s_bfe_u32 s{sNg}, s2, 0x20006")
    a(f"s_lshl_b32 s{sB}, s{sB}, 2")
    a(f"s_or_b32 s{sNg}, s{sNg}, s{sB}")
    a(f"s_cmp_ge_u32 s{sW}, 4")
    a("s_cbranch_scc1 K1_LOADER")
    a(f"s_cmp_ge_u32 s{sW}, 2")
    a("s_cbranch_scc1 K1_CONS1")
    gen_consumer(a, 0, diag)
    a.label("K1_CONS1")
    gen_consumer(a, 1, diag)
    a.label("K1_LOADER")
    a(f"s_cmp_ge_u32 s{sW}, 6")
    a("s_cbranch_scc1 K1_LOADER1")
    gen_loader(a, 0)
    a.label("K1_LOADER1")
    gen_loader(a, 1)
    a.label("K1_END")
    a("s_endpgm")
    return a.text()

K1_DESC = """
.amdhsa_kernel {name}
  .amdhsa_next_free_vgpr 240
  .amdhsa_next_free_sgpr 102
  .amdhsa_accum_offset 240
  .amdhsa_group_segment_fixed_size 0
  .amdhsa_kernarg_size 72
  .amdhsa_user_sgpr_count 2
  .amdhsa_user_sgpr_kernarg_segment_ptr 1
  .amdhsa_system_sgpr_workgroup_id_x 1
  .amdhsa_float_denorm_mode_32 3
.end_amdhsa_kernel
"""
K1_LAUNCH = f"grid=(256,1,1) block=(512,1,1) lds={NS*STG}"
```

```python
from asm import *
from layout import *

NEG = 0xF149F2CA
vKm, vKr, vV, vQr, vO, vO3, vLW, vLR = 1, 2, 3, 4, 5, 6, 7, 8
T0 = 9
O_ = [16, 32, 48, 64]
S_ = [80, 96]
P_ = 112
QA = [120, 126, 132, 138]
ST = [144, 158, 172]
QB = 186
KB = [192 + 6 * i for i in range(9)]
VB = [16 + 8 * i for i in range(8)] + [120]
OB = 128
R_ = 144
TA, TB = 156, 168
MD, MF = 144, 160
sSRD = 8
sHead, sG, sW, sPass = 12, 13, 14, 15
sKm = [16, 17, 18, 19]; sKr = 20; sV = [21, 22, 23, 24, 25, 26]
sQm, sQr, sOA, sOB = 27, 28, 29, 30
sT8, sKmB, sKrB, sVB, sQmB, sQrB = 31, 32, 33, 34, 35, 36
sA, sB = 37, 38
sLo = 72
sFail = 39
sCmp = 40

def mfma16(a, d, x, y, c):
    a(f"v_mfma_f32_32x32x16_bf16 {vr(d,16)}, {vr(x,4)}, {vr(y,4)}, {c if isinstance(c,str) else vr(c,16)}")
def mfma8(a, d, x, y, c):
    a(f"v_mfma_f32_32x32x8_bf16 {vr(d,16)}, {vr(x,2)}, {vr(y,2)}, {vr(c,16)}")

def load_k(a, kt, tag):
    st = ST[kt % 3]
    a.vmem(f"buffer_load_dwordx4 {vr(st,4)}, v{vKm}, s[8:11], s{sKm[kt//4]} offen offset:{(kt%4)*1024}", tag)
    a.vmem(f"buffer_load_dword v{st+4}, v{vKr}, s[8:11], s{sKr} offen offset:{kt*128}", tag)
def load_v(a, kt, tag):
    st = ST[kt % 3]
    o = (kt % 3) * 1216
    a.vmem(f"buffer_load_dwordx4 {vr(st+6,4)}, v{vV}, s[8:11], s{sV[kt//3]} offen offset:{o}", tag)
    a.vmem(f"buffer_load_dwordx4 {vr(st+10,4)}, v{vV}, s[8:11], s{sV[kt//3]} offen offset:{o+608}", tag)

def exps(a, s, lo):
    for r in range(lo, lo + 4):
        a(f"v_exp_f32 v{s+r}, v{s+r}")
    a(f"v_cvt_pk_bf16_f32 v{P_+lo//2}, v{s+lo}, v{s+lo+1}")
    a(f"v_cvt_pk_bf16_f32 v{P_+lo//2+1}, v{s+lo+2}, v{s+lo+3}")

def b_tile_index(a, i):
    a(f"s_add_i32 s{sA}, s{sT8}, {i}")
    a(f"s_max_i32 s{sA}, s{sA}, 0")

def normalize_store(a, R, sO, tag, check):
    a(f"v_mov_b32 v{T0}, v{R+10}")
    a(f"v_mov_b32 v{T0+1}, v{R+10}")
    a.nop(2)
    a(f"v_permlane32_swap_b32 v{T0}, v{T0+1}")
    if check:
        a(f"v_add_f32 v{T0+2}, |v{R}|, |v{R+1}|")
        for r in range(2, 10):
            a(f"v_add_f32 v{T0+2}, v{T0+2}, |v{R+r}|")
        a(f"s_mov_b32 s{sA}, 0x1f800000")
        a(f"s_mov_b32 s{sB}, 0x5f800000")
        a(f"v_cmp_le_f32 s[40:41], s{sA}, v{T0}")
        a(f"v_cmp_ge_f32 s[42:43], s{sB}, v{T0}")
        a(f"s_mov_b32 s{sA}, 0x7e800000")
        a(f"v_cmp_gt_f32 s[44:45], s{sA}, v{T0+2}")
    a(f"v_rcp_f32 v{T0}, v{T0}")
    if check:
        a("s_nop 3")
        a("s_and_b64 s[40:41], s[40:41], s[42:43]")
        a("s_and_b64 s[40:41], s[40:41], s[44:45]")
        a("s_cmp_eq_u64 s[40:41], -1")
        a(f"s_cselect_b32 s{sFail}, 0, 1")
    else:
        a.nop(1)
    for r in range(10):
        a(f"v_mul_f32 v{R+r}, v{R+r}, v{T0}")
    a(f"v_cvt_pk_bf16_f32 v{T0+1}, v{R+8}, v{R+9}")
    a(f"v_cvt_pk_bf16_f32 v{T0+3}, v{R}, v{R+1}")
    a(f"v_cvt_pk_bf16_f32 v{T0+4}, v{R+2}, v{R+3}")
    a(f"v_cvt_pk_bf16_f32 v{T0+5}, v{R+4}, v{R+5}")
    a(f"v_cvt_pk_bf16_f32 v{T0+6}, v{R+6}, v{R+7}")
    a.vmem(f"buffer_store_dword v{T0+1}, v{vO3}, s[8:11], s{sO} offen", tag)
    a.vmem(f"buffer_store_dwordx2 {vr(T0+3,2)}, v{vO}, s[8:11], s{sO} offen", tag)
    a.vmem(f"buffer_store_dwordx2 {vr(T0+5,2)}, v{vO}, s[8:11], s{sO} offen offset:16", tag)

def split_neg_max(a, vm, dst, tmp):
    a(f"v_sub_f32 v{tmp}, 0, v{vm}")
    a(f"v_and_b32 v{tmp+1}, 0xffff0000, v{tmp}")
    a(f"v_sub_f32 v{tmp}, v{tmp}, v{tmp+1}")
    a(f"v_cvt_pk_bf16_f32 v{tmp}, v{tmp+1}, v{tmp}")
    a(f"v_cndmask_b32 v{dst}, v{dst}, v{tmp}, s[{sLo}:{sLo+1}]")

def gen_k2(name="attn_kernel", diag=False):
    a = Asm()
    a(f".p2align 8\n.type {name},@function")
    a.label(name)
    a("s_cmp_ge_u32 s2, 512")
    a("s_cbranch_scc1 K2_END")
    if diag: diag_start(a)
    a("s_load_dwordx2 s[4:5], s[0:1], 64")
    a("v_lshrrev_b32 v9, 6, v0")
    a("v_and_b32 v0, 63, v0")
    a(f"v_readfirstlane_b32 s{sW}, v9")
    a("s_and_b32 s3, s2, 7")
    a("s_lshl_b32 s3, s3, 2")
    a(f"s_bfe_u32 s{sHead}, s2, 0x20003")
    a(f"s_or_b32 s{sHead}, s{sHead}, s3")
    a(f"s_lshr_b32 s{sG}, s2, 5")
    a(f"s_mov_b32 s{sPass}, 0")
    a(f"s_mov_b32 s{sLo}, -1")
    a(f"s_mov_b32 s{sLo+1}, 0")
    a(f"v_lshlrev_b32 v{vKm}, 4, v0")
    a(f"v_and_b32 v9, 31, v0")
    a(f"v_lshlrev_b32 v{vKr}, 2, v9")
    a(f"v_lshrrev_b32 v10, 5, v0")
    a(f"v_bfrev_b32 v11, 1")
    a(f"v_mul_u32_u24 v12, 304, v10")
    a(f"v_lshl_add_u32 v12, v9, 4, v12")
    a(f"v_cmp_gt_u32 vcc, 19, v9")
    a(f"v_cmp_gt_u32 s[40:41], 32, v0")
    a(f"v_mul_u32_u24 v13, 1152, v9")
    a(f"v_cndmask_b32 v{vV}, v11, v12, vcc")
    a(f"v_cndmask_b32 v{vQr}, v11, v{vKr}, s[40:41]")
    a(f"v_lshl_add_u32 v{vO}, v10, 3, v13")
    a(f"v_add_u32 v13, 32, v13")
    a(f"v_cndmask_b32 v{vO3}, v11, v13, s[40:41]")
    a(f"s_lshl_b32 s{sA}, s{sHead}, 16")
    a(f"s_lshl_b32 s{sB}, s{sW}, 14")
    a(f"s_add_u32 s{sKm[0]}, s{sA}, s{sB}")
    a(f"s_add_u32 s{sKm[0]}, s{sKm[0]}, {KM_OFF}")
    for j in range(1, 4):
        a(f"s_add_u32 s{sKm[j]}, s{sKm[0]}, {4096*j}")
    a(f"s_add_u32 s{sKmB}, s{sA}, {KM_OFF + M_BR}")
    a(f"s_lshl_b32 s{sB}, s{sG}, 12")
    a(f"s_add_u32 s{sQm}, s{sA}, s{sB}")
    a(f"s_lshl_b32 s{sB}, s{sW}, 10")
    a(f"s_add_u32 s{sQmB}, s{sQm}, s{sB}")
    a(f"s_add_u32 s{sQmB}, s{sQmB}, {QM_OFF + M_BR}")
    a(f"s_lshl_b32 s{sA}, s{sHead}, 13")
    a(f"s_lshl_b32 s{sB}, s{sW}, 11")
    a(f"s_add_u32 s{sKr}, s{sA}, s{sB}")
    a(f"s_add_u32 s{sKr}, s{sKr}, {KR_OFF}")
    a(f"s_add_u32 s{sKrB}, s{sA}, {KR_OFF + R_BR}")
    a(f"s_lshl_b32 s{sB}, s{sG}, 9")
    a(f"s_add_u32 s{sQr}, s{sA}, s{sB}")
    a(f"s_add_u32 s{sQr}, s{sQr}, {QR_OFF}")
    a(f"s_lshl_b32 s{sB}, s{sW}, 7")
    a(f"s_add_u32 s{sQrB}, s{sQr}, s{sB}")
    a(f"s_add_u32 s{sQrB}, s{sQrB}, {R_BR}")
    a(f"s_mul_i32 s{sA}, s{sHead}, {VT_HEAD}")
    a(f"s_add_u32 s{sVB}, s{sA}, {VT_OFF + VT_BR}")
    a(f"s_mul_i32 s{sB}, s{sW}, {16*1216}")
    a(f"s_add_u32 s{sV[0]}, s{sA}, s{sB}")
    a(f"s_add_u32 s{sV[0]}, s{sV[0]}, {VT_OFF}")
    for j in range(1, 6):
        a(f"s_add_u32 s{sV[j]}, s{sV[0]}, {3648*j}")
    a(f"s_lshl_b32 s{sA}, s{sG}, 2")
    a(f"s_add_u32 s{sA}, s{sA}, s{sW}")
    a(f"s_sub_i32 s{sT8}, s{sA}, 8")
    a(f"s_mul_i32 s{sA}, s{sA}, {32*1152}")
    a(f"s_mul_i32 s{sB}, s{sHead}, 36")
    a(f"s_add_u32 s{sOA}, s{sA}, s{sB}")
    a(f"s_add_u32 s{sOA}, s{sOA}, {O_OFF}")
    a(f"s_add_u32 s{sOB}, s{sOA}, {O_BR}")
    a(f"s_mul_i32 s{sA}, s{sW}, 3072")
    a(f"s_mul_i32 s{sB}, s{sW}, 12288")
    a(f"v_add_u32 v{vLW}, s{sA}, v{vKm}")
    a(f"v_add_u32 v{vLR}, s{sB}, v{vKm}")
    for st in ST:
        a(f"v_mov_b32 v{st+5}, 0x3f803f80")
    for q in QA:
        a(f"v_mov_b32 v{q+5}, 0")
    a("s_waitcnt lgkmcnt(0)")
    a("s_mov_b32 s8, s4")
    a("s_and_b32 s9, s5, 0xffff")
    a(f"s_mov_b32 s10, {WS_USED}")
    a("s_mov_b32 s11, 0x00020000")
    for i in range(4):
        a.vmem(f"buffer_load_dwordx4 {vr(QA[i],4)}, v{vKm}, s[8:11], s{sQm} offen offset:{i*1024}", "QA")
        a.vmem(f"buffer_load_dword v{QA[i]+4}, v{vQr}, s[8:11], s{sQr} offen offset:{i*128}", "QA")
    a.label("K2_A_START")
    for kt in range(3):
        load_k(a, kt, f"K{kt}")
        load_v(a, kt, f"V{kt}")
    a.wait_vm("K0")
    if diag: diag_mark(a, 0)
    mfma16(a, S_[0], ST[0], QA[0], "0")
    mfma8(a, S_[0], ST[0] + 4, QA[0] + 4, S_[0])
    a.nop(12)
    NT = 64
    for t in range(NT):
        kt, i = divmod(t, 4)
        s = S_[t % 2]; sn = S_[(t + 1) % 2]
        kn, in_ = divmod(t + 1, 4)
        if i == 3 and kt + 3 < 16:
            load_k(a, kt + 3, f"K{kt+3}")
        if i == 1 and kt >= 1 and kt + 2 < 16:
            load_v(a, kt + 2, f"V{kt+2}")
        if i == 2 and 4 <= kt <= 12:
            j = kt - 4
            b_tile_index(a, j)
            a(f"s_lshl_b32 s{sB}, s{sA}, 10")
            a(f"s_add_u32 s{sB}, s{sB}, s{sKmB}")
            a.vmem(f"buffer_load_dwordx4 {vr(KB[j],4)}, v{vKm}, s[8:11], s{sB} offen", "KB")
            a(f"s_lshl_b32 s{sB}, s{sA}, 7")
            a(f"s_add_u32 s{sB}, s{sB}, s{sKrB}")
            a.vmem(f"buffer_load_dword v{KB[j]+4}, v{vKr}, s[8:11], s{sB} offen", "KB")
        if i == 2 and kt == 13:
            a.vmem(f"buffer_load_dwordx4 {vr(QB,4)}, v{vKm}, s[8:11], s{sQmB} offen", "KB")
            a.vmem(f"buffer_load_dword v{QB+4}, v{vQr}, s[8:11], s{sQrB} offen", "KB")
        if t + 1 < NT:
            if in_ == 0:
                a.wait_vm(f"K{kn}")
            mfma16(a, sn, ST[kn % 3], QA[in_], "0")
        exps(a, s, 0)
        if t + 1 < NT:
            mfma8(a, sn, ST[kn % 3] + 4, QA[in_] + 4, sn)
        exps(a, s, 4)
        if t > 0:
            kp, ip = divmod(t - 1, 4)
            mfma16(a, O_[ip], ST[kp % 3] + 10, P_ + 4, O_[ip])
        exps(a, s, 8)
        if i == 0:
            a.wait_vm(f"V{kt}")
        mfma16(a, O_[i], ST[kt % 3] + 6, P_, "0" if kt == 0 else O_[i])
        exps(a, s, 12)
    if diag: diag_mark(a, 1)
    a.nop(2)
    mfma16(a, O_[3], ST[15 % 3] + 10, P_ + 4, O_[3])
    a.nop(12)
    for i in range(4):
        for q in range(3):
            a(f"ds_write_b128 v{vLW}, {vr(O_[i]+4*q,4)} offset:{i*12288 + q*1024}")
    a("s_waitcnt lgkmcnt(0)")
    a("s_barrier")
    a(f"s_cmp_lg_u32 s{sPass}, 0")
    a("s_cbranch_scc1 K2_SKIP_VB")
    for j in range(9):
        b_tile_index(a, j)
        a(f"s_mul_i32 s{sB}, s{sA}, 1216")
        a(f"s_add_u32 s{sB}, s{sB}, s{sVB}")
        a.vmem(f"buffer_load_dwordx4 {vr(VB[j],4)}, v{vV}, s[8:11], s{sB} offen", f"VB{j}")
        a.vmem(f"buffer_load_dwordx4 {vr(VB[j]+4,4)}, v{vV}, s[8:11], s{sB} offen offset:608", f"VB{j}")
    a.label("K2_SKIP_VB")
    for q in range(3):
        a(f"ds_read_b128 {vr(R_+4*q,4)}, v{vLR} offset:{q*1024}")
    for q in range(3):
        a(f"ds_read_b128 {vr(TA+4*q,4)}, v{vLR} offset:{3072 + q*1024}")
    for q in range(3):
        a(f"ds_read_b128 {vr(TB+4*q,4)}, v{vLR} offset:{6144 + q*1024}")
    a("s_waitcnt lgkmcnt(3)")
    for r in range(11):
        a(f"v_add_f32 v{R_+r}, v{R_+r}, v{TA+r}")
    for q in range(3):
        a(f"ds_read_b128 {vr(TA+4*q,4)}, v{vLR} offset:{9216 + q*1024}")
    a("s_waitcnt lgkmcnt(3)")
    for r in range(11):
        a(f"v_add_f32 v{R_+r}, v{R_+r}, v{TB+r}")
    a("s_waitcnt lgkmcnt(0)")
    for r in range(11):
        a(f"v_add_f32 v{R_+r}, v{R_+r}, v{TA+r}")
    normalize_store(a, R_, sOA, "OA", check=True)
    a(f"s_cmp_lg_u32 s{sPass}, 0")
    a("s_cbranch_scc1 K2_FIN")
    a(f"v_mov_b32 v{T0}, s{sFail}")
    a(f"s_lshl_b32 s{sA}, s{sW}, 2")
    a(f"s_add_u32 s{sA}, s{sA}, 49152")
    a(f"v_mov_b32 v{T0+1}, s{sA}")
    a(f"ds_write_b32 v{T0+1}, v{T0}")
    if diag: diag_mark(a, 2)
    a(f"v_lshrrev_b32 v{T0}, 5, v0")
    a(f"v_and_b32 v{T0+1}, 31, v0")
    a(f"v_lshlrev_b32 v{T0}, 3, v{T0}")
    a(f"v_sub_u32 v{T0}, v{T0+1}, v{T0}")
    a(f"v_mov_b32 v{T0+1}, {NEG:#x}")
    kc = [16 * (r >> 3) + 4 * ((r >> 2) & 1) + (r & 3) for r in range(16)]
    for r in range(16):
        a(f"v_cmp_le_i32 s[{sCmp+2*r}:{sCmp+2*r+1}], {kc[r]}, v{T0}")
    for r in range(16):
        a(f"v_cndmask_b32 v{MD+r}, v{T0+1}, 0, s[{sCmp+2*r}:{sCmp+2*r+1}]")
    for r in range(16):
        a(f"v_cndmask_b32 v{MF+r}, 0, v{T0+1}, s[{sCmp+2*r}:{sCmp+2*r+1}]")
    a(f"v_mov_b32 v{T0}, 0x3f803f80")
    a(f"v_mov_b32 v{T0+1}, 0x3f80")
    a(f"v_cndmask_b32 v{QB+5}, v{T0+1}, 0, s[{sLo}:{sLo+1}]")
    for j in range(9):
        a(f"s_add_i32 s{sA}, s{sT8}, {j}")
        a(f"s_cmp_lt_i32 s{sA}, 0")
        a(f"s_cselect_b32 s{sA}, 0xf14a, 0")
        a(f"v_mov_b32 v{T0+1}, s{sA}")
        a(f"v_cndmask_b32 v{KB[j]+5}, v{T0+1}, v{T0}, s[{sLo}:{sLo+1}]")
    a.wait_vm("KB")
    def cmask(j): return MF if j == 0 else (MD if j == 8 else "0")
    mx = [T0, T0 + 1]
    mfma16(a, S_[0], KB[0], QB, cmask(0))
    mfma8(a, S_[0], KB[0] + 4, QB + 4, S_[0])
    for j in range(9):
        s = S_[j % 2]; sn = S_[(j + 1) % 2]
        if j + 1 < 9:
            mfma16(a, sn, KB[j+1], QB, cmask(j + 1))
            mfma8(a, sn, KB[j+1] + 4, QB + 4, sn)
            a.nop(10 if j == 0 else 2)
        else:
            a.nop(4)
        for r in range(0, 16, 4):
            if j == 0 and r == 0:
                a(f"v_max_f32 v{mx[0]}, v{s}, v{s+1}")
                a(f"v_max_f32 v{mx[1]}, v{s+2}, v{s+3}")
            else:
                a(f"v_max3_f32 v{mx[0]}, v{mx[0]}, v{s+r}, v{s+r+1}")
                a(f"v_max3_f32 v{mx[1]}, v{mx[1]}, v{s+r+2}, v{s+r+3}")
    a(f"v_max_f32 v{T0}, v{mx[0]}, v{mx[1]}")
    a(f"v_mov_b32 v{T0+1}, v{T0}")
    a.nop(2)
    a(f"v_permlane32_swap_b32 v{T0}, v{T0+1}")
    a(f"v_max_f32 v{T0}, v{T0}, v{T0+1}")
    split_neg_max(a, T0, QB + 5, T0 + 2)
    a.nop(2)
    mfma16(a, S_[0], KB[0], QB, cmask(0))
    mfma8(a, S_[0], KB[0] + 4, QB + 4, S_[0])
    a.nop(12)
    for j in range(9):
        s = S_[j % 2]; sn = S_[(j + 1) % 2]
        if j + 1 < 9:
            mfma16(a, sn, KB[j+1], QB, cmask(j + 1))
        exps(a, s, 0)
        if j + 1 < 9:
            mfma8(a, sn, KB[j+1] + 4, QB + 4, sn)
        exps(a, s, 4)
        if j > 0:
            mfma16(a, OB, VB[j-1] + 4, P_ + 4, OB)
        exps(a, s, 8)
        a.wait_vm(f"VB{j}")
        mfma16(a, OB, VB[j], P_, "0" if j == 0 else OB)
        exps(a, s, 12)
    a.nop(2)
    mfma16(a, OB, VB[8] + 4, P_ + 4, OB)
    a.nop(12)
    normalize_store(a, OB, sOB, "OB", check=False)
    a("s_waitcnt lgkmcnt(0)")
    a("s_barrier")
    a(f"v_mov_b32 v{T0}, 49152")
    a(f"ds_read_b128 {vr(T0+1+0,4) if False else 'v[12:15]'}, v{T0}")
    a("s_waitcnt lgkmcnt(0)")
    a("v_or_b32 v12, v12, v13")
    a("v_or3_b32 v12, v12, v14, v15")
    a("s_nop 0")
    a(f"v_readfirstlane_b32 s{sA}, v12")
    a("s_nop 3")
    a(f"s_cmp_eq_u32 s{sA}, 0")
    a("s_cbranch_scc1 K2_FIN")
    a("s_waitcnt vmcnt(0)")
    a(f"s_mov_b32 s{sPass}, 1")
    for st in ST:
        a(f"v_mov_b32 v{st+5}, 0x3f803f80")
    for i in range(4):
        a(f"v_mov_b32 v{QA[i]+5}, 0")
        a(f"buffer_load_dwordx4 {vr(QA[i],4)}, v{vKm}, s[8:11], s{sQm} offen offset:{i*1024}")
        a(f"buffer_load_dword v{QA[i]+4}, v{vQr}, s[8:11], s{sQr} offen offset:{i*128}")
    mxs = [T0, T0 + 1, T0 + 2, T0 + 3]
    for i in range(4):
        a(f"v_mov_b32 v{mxs[i]}, 0xff7fffff")
    a(f"s_mov_b32 s{sA}, s{sKm[0]}")
    a(f"s_mov_b32 s{sB}, s{sKr}")
    a(f"s_mov_b32 s{sCmp}, 16")
    a.label("K2_FB_LOOP")
    a(f"buffer_load_dwordx4 {vr(ST[0],4)}, v{vKm}, s[8:11], s{sA} offen")
    a(f"buffer_load_dword v{ST[0]+4}, v{vKr}, s[8:11], s{sB} offen")
    a("s_waitcnt vmcnt(0)")
    for i in range(4):
        mfma16(a, S_[0], ST[0], QA[i], "0")
        mfma8(a, S_[0], ST[0] + 4, QA[i] + 4, S_[0])
        a.nop(12)
        for r in range(0, 16, 2):
            a(f"v_max3_f32 v{mxs[i]}, v{mxs[i]}, v{S_[0]+r}, v{S_[0]+r+1}")
    a(f"s_add_u32 s{sA}, s{sA}, 1024")
    a(f"s_add_u32 s{sB}, s{sB}, 128")
    a(f"s_sub_u32 s{sCmp}, s{sCmp}, 1")
    a(f"s_cmp_lg_u32 s{sCmp}, 0")
    a("s_cbranch_scc1 K2_FB_LOOP")
    for i in range(4):
        a(f"v_mov_b32 v{T0+4}, v{mxs[i]}")
        a.nop(2)
        a(f"v_permlane32_swap_b32 v{mxs[i]}, v{T0+4}")
        a(f"v_max_f32 v{mxs[i]}, v{mxs[i]}, v{T0+4}")
    a(f"s_lshl_b32 s{sA}, s{sW}, 10")
    a(f"v_add_u32 v{T0+4}, s{sA}, v{vKm}")
    a(f"v_mov_b32 v{S_[0]}, v{mxs[0]}")
    a(f"v_mov_b32 v{S_[0]+1}, v{mxs[1]}")
    a(f"v_mov_b32 v{S_[0]+2}, v{mxs[2]}")
    a(f"v_mov_b32 v{S_[0]+3}, v{mxs[3]}")
    a(f"ds_write_b128 v{T0+4}, {vr(S_[0],4)}")
    a("s_waitcnt lgkmcnt(0)")
    a("s_barrier")
    for ww in range(4):
        a(f"ds_read_b128 {vr(S_[1]+4*ww,4)}, v{vKm} offset:{ww*1024}")
    a("s_waitcnt lgkmcnt(0)")
    for i in range(4):
        a(f"v_max3_f32 v{mxs[i]}, v{S_[1]+i}, v{S_[1]+4+i}, v{S_[1]+8+i}")
        a(f"v_max_f32 v{mxs[i]}, v{mxs[i]}, v{S_[1]+12+i}")
    for i in range(4):
        split_neg_max(a, mxs[i], QA[i] + 5, T0 + 4)
    a("s_barrier")
    a("s_branch K2_A_START")
    a.label("K2_FIN")
    if diag: diag_end(a, 1, sW, 4, 16)
    a.label("K2_END")
    a("s_endpgm")
    return a.text()

K2_DESC = """
.amdhsa_kernel {name}
  .amdhsa_next_free_vgpr 248
  .amdhsa_next_free_sgpr 102
  .amdhsa_accum_offset 248
  .amdhsa_group_segment_fixed_size 0
  .amdhsa_kernarg_size 72
  .amdhsa_user_sgpr_count 2
  .amdhsa_user_sgpr_kernarg_segment_ptr 1
  .amdhsa_system_sgpr_workgroup_id_x 1
  .amdhsa_float_denorm_mode_32 3
.end_amdhsa_kernel
"""
K2_LAUNCH = "grid=(512,1,1) block=(256,1,1) lds=49216"
```

```python
from asm import *
from layout import *
import os

OF = 0
ACC = 144
FW = [184, 204]
VD = [224, 225, 226, 227, 228]
VO, AW, VS, VS4 = 229, 230, 232, 233
T = 234
sW, sBr, sMt, sNg = 3, 12, 13, 14
sA, sB, sC = 15, 16, 17
CH = 5120

def acc(n, tt): return ACC + (n * 2 + tt) * 4

def gen_k3(name="proj_kernel", diag=False):
    a = Asm()
    a(f".p2align 8\n.type {name},@function")
    a.label(name)
    a("s_cmp_ge_u32 s2, 256")
    a("s_cbranch_scc1 K3_END")
    if diag: diag_start(a)
    a("s_load_dwordx2 s[4:5], s[0:1], 16")
    a("s_load_dwordx2 s[6:7], s[0:1], 40")
    a("s_load_dwordx2 s[8:9], s[0:1], 48")
    a("s_load_dwordx2 s[10:11], s[0:1], 64")
    a("v_lshrrev_b32 v1, 6, v0")
    a("v_and_b32 v0, 63, v0")
    a(f"v_readfirstlane_b32 s{sW}, v1")
    a(f"s_bfe_u32 s{sBr}, s2, 0x10002")
    a(f"s_and_b32 s{sA}, s2, 3")
    a(f"s_lshl_b32 s{sA}, s{sA}, 2")
    a(f"s_bfe_u32 s{sMt}, s2, 0x20003")
    a(f"s_or_b32 s{sMt}, s{sMt}, s{sA}")
    a(f"s_lshr_b32 s{sNg}, s2, 5")
    t = T
    a(f"s_mul_i32 s{sA}, s{sNg}, 144")
    for r in range(5):
        a(f"v_add_u32 v{t}, {64*r}, v0")
        a(f"v_mul_u32_u24 v{t+1}, 6554, v{t}")
        a(f"v_lshrrev_b32 v{t+1}, 16, v{t+1}")
        a(f"v_mul_u32_u24 v{t+2}, 10, v{t+1}")
        a(f"v_sub_u32 v{t+2}, v{t}, v{t+2}")
        a(f"v_and_b32 v{t+3}, 4, v{t+1}")
        a(f"v_and_b32 v{t+4}, 8, v{t+1}")
        a(f"v_and_b32 v{t+5}, 19, v{t+1}")
        a(f"v_lshl_or_b32 v{t+5}, v{t+3}, 1, v{t+5}")
        a(f"v_lshrrev_b32 v{t+4}, 1, v{t+4}")
        a(f"v_or_b32 v{t+5}, v{t+5}, v{t+4}")
        a(f"v_mul_u32_u24 v{t+5}, 1152, v{t+5}")
        a(f"v_lshl_add_u32 v{t+5}, v{t+2}, 4, v{t+5}")
        a(f"v_add_u32 v{t+5}, s{sA}, v{t+5}")
        a(f"v_cmp_gt_u32 vcc, 9, v{t+2}")
        a(f"v_bfrev_b32 v{t+6}, 1")
        a("s_nop 0")
        a(f"v_cndmask_b32 v{VD[r]}, v{t+6}, v{t+5}, vcc")
    a(f"v_and_b32 v{t}, 15, v0")
    a(f"v_lshrrev_b32 v{t+1}, 4, v0")
    a(f"v_mul_u32_u24 v{t+2}, 1152, v{t}")
    a(f"v_lshl_add_u32 v{VO}, v{t+1}, 4, v{t+2}")
    a(f"v_lshrrev_b32 v{t+2}, 1, v{t+1}")
    a(f"v_and_b32 v{t+3}, 1, v{t+1}")
    a(f"v_bfe_u32 v{t+4}, v0, 2, 2")
    a(f"v_lshl_add_u32 v{t+4}, v{t+3}, 2, v{t+4}")
    a(f"v_lshl_add_u32 v{t+4}, v{t+2}, 4, v{t+4}")
    a(f"v_mul_u32_u24 v{t+4}, 160, v{t+4}")
    a(f"v_and_b32 v{t+5}, 3, v0")
    a(f"v_lshl_add_u32 v{AW}, v{t+5}, 3, v{t+4}")
    a(f"v_add_u32 v{AW+1}, {9*CH}, v{AW}")
    a(f"v_lshl_add_u32 v{t+4}, v{t+3}, 4, v{t}")
    a(f"v_mul_u32_u24 v{t+4}, 2304, v{t+4}")
    a(f"v_lshl_add_u32 v{VS}, v{t+2}, 4, v{t+4}")
    a(f"v_bfrev_b32 v{t+5}, 1")
    a(f"v_cmp_gt_u32 vcc, 32, v0")
    a("s_nop 1")
    a(f"v_cndmask_b32 v{VS4}, v{t+5}, v{VS}, vcc")
    sO, sOut, sKD, sM0, sT = 30, 31, 32, 33, 34
    a(f"s_lshl_b32 s{sA}, s{sMt}, 2")
    a(f"s_add_u32 s{sA}, s{sA}, s{sW}")
    a(f"s_mul_i32 s{sO}, s{sA}, {32*1152}")
    a(f"s_mul_i32 s{sB}, s{sBr}, {O_BR}")
    a(f"s_add_u32 s{sO}, s{sO}, s{sB}")
    a(f"s_add_u32 s{sO}, s{sO}, {O_OFF}")
    a(f"s_mul_i32 s{sOut}, s{sA}, {32*2304}")
    a(f"s_mul_i32 s{sB}, s{sBr}, 1152")
    a(f"s_add_u32 s{sOut}, s{sOut}, s{sB}")
    a(f"s_mul_i32 s{sB}, s{sNg}, 144")
    a(f"s_add_u32 s{sOut}, s{sOut}, s{sB}")
    sCh = [35, 36, 37, 38, 39]
    for j in range(4): a(f"s_add_u32 s{sCh[j]}, s{sW}, {4*j}")
    a(f"s_and_b32 s{sB}, s{sW}, 1")
    a(f"s_add_u32 s{sCh[4]}, s{sB}, 16")
    a("s_waitcnt lgkmcnt(0)")
    a(f"s_cmp_eq_u32 s{sBr}, 0")
    a("s_cselect_b32 s20, s4, s6")
    a("s_cselect_b32 s21, s5, s7")
    a("s_and_b32 s21, s21, 0xffff")
    a(f"s_mov_b32 s22, {D*D*2}")
    a("s_mov_b32 s23, 0x00020000")
    a("s_mov_b32 s24, s10")
    a("s_and_b32 s25, s11, 0xffff")
    a(f"s_mov_b32 s26, {WS_USED}")
    a("s_mov_b32 s27, 0x00020000")
    a("s_mov_b32 s40, s8")
    a("s_and_b32 s41, s9, 0xffff")
    a(f"s_mov_b32 s42, {S*1152*2}")
    a("s_mov_b32 s43, 0x00020000")
    macro = [list(range(4*j, min(4*j + 4, 18))) for j in range(5)]
    def loads(j):
        out = []
        out.append([f"s_mul_i32 s{sKD}, s{sCh[j]}, {32*1152}", f"s_mul_i32 s{sM0}, s{sCh[j]}, {CH}"])
        dm = []
        for r in range(5):
            dm.append(([f"s_add_u32 m0, s{sM0}, {1024*r}", "s_nop 0"],
                       f"buffer_load_dwordx4 v{VD[r]}, s[20:23], s{sKD} offen lds"))
        ol = []
        for c in macro[j]:
            for tt in range(2):
                off = c * 64 + tt * 16 * 1152
                pre = [f"s_add_u32 s{sT}, s{sO}, {off}"]
                ol.append((pre, f"buffer_load_dwordx4 {vr(OF + (c*2+tt)*4, 4)}, v{VO}, s[24:27], s{sT} offen"))
        seq = []
        seq += ol[:2] + dm[:2] + ol[2:4] + dm[2:] + ol[4:]
        return out[0], seq
    def issue(item, tag):
        pre, ins = item
        for p in pre: a(p)
        a.vmem(ins, tag)
    for j in range(2):
        pre, seq = loads(j)
        for p in pre: a(p)
        for it in seq: issue(it, f"m{j}")
    def reads(c):
        buf = c % 2
        sset, so = (0, c * CH) if c < 9 else (1, (c - 9) * CH)
        return [f"ds_read_b64_tr_b16 {vr(FW[buf] + 4*n + 2*rd, 2)}, v{AW+sset} offset:{so + n*32 + rd*1280}"
                for n in range(5) for rd in range(2)]
    a.wait_vm("m0")
    a("s_barrier")
    if diag: diag_mark(a, 0)
    for r in reads(0): a(r)
    pend = []
    for c in range(18):
        j = c // 4
        if c % 4 == 0 and j + 2 < 5:
            pre, seq = loads(j + 2)
            pend = [("pre", pre)] + [("ld", it, f"m{j+2}") for it in seq]
        last = (c % 4 == 3)
        a("s_waitcnt lgkmcnt(0)")
        if last:
            while pend:
                p = pend.pop(0)
                if p[0] == "pre":
                    for x in p[1]: a(x)
                else: issue(p[1], p[2])
            a.wait_vm(f"m{j+1}")
            a("s_barrier")
        rd = reads(c + 1) if c + 1 < 18 else []
        buf = c % 2
        k = 0
        for n in range(5):
            for tt in range(2):
                cc = "0" if c == 0 else vr(acc(n, tt), 4)
                a(f"v_mfma_f32_16x16x32_bf16 {vr(acc(n,tt),4)}, {vr(FW[buf]+4*n,4)}, {vr(OF+(c*2+tt)*4,4)}, {cc}")
                if k < len(rd): a(rd[k]); k += 1
                if pend and (n * 2 + tt) % 2 == 1:
                    p = pend.pop(0)
                    if p[0] == "pre":
                        for x in p[1]: a(x)
                    else: issue(p[1], p[2])
    if diag: diag_mark(a, 1)
    a.nop(8)
    for n in range(5):
        d = T + 4 * (n % 3)
        A = acc(n, 0); B = acc(n, 1)
        a(f"v_cvt_pk_bf16_f32 v{d}, v{A}, v{A+1}")
        a(f"v_cvt_pk_bf16_f32 v{d+1}, v{A+2}, v{A+3}")
        a(f"v_cvt_pk_bf16_f32 v{d+2}, v{B}, v{B+1}")
        a(f"v_cvt_pk_bf16_f32 v{d+3}, v{B+2}, v{B+3}")
        a.nop(2)
        a(f"v_permlane16_swap_b32 v{d}, v{d+2}")
        a(f"v_permlane16_swap_b32 v{d+1}, v{d+3}")
        a(f"buffer_store_dwordx4 {vr(d,4)}, v{VS if n < 4 else VS4}, s[40:43], s{sOut} offen offset:{n*32}")
    if diag:
        diag_mark(a, 2)
        a("s_waitcnt vmcnt(0)")
        a("s_mov_b32 s4, s24"); a("s_mov_b32 s5, s25")
        diag_end(a, 2, sW, 4, 16)
    a.label("K3_END")
    a("s_endpgm")
    return a.text()

K3_DESC = """
.amdhsa_kernel {name}
  .amdhsa_next_free_vgpr 248
  .amdhsa_next_free_sgpr 102
  .amdhsa_accum_offset 248
  .amdhsa_group_segment_fixed_size 0
  .amdhsa_kernarg_size 72
  .amdhsa_user_sgpr_count 2
  .amdhsa_user_sgpr_kernarg_segment_ptr 1
  .amdhsa_system_sgpr_workgroup_id_x 1
  .amdhsa_float_denorm_mode_32 3
.end_amdhsa_kernel
"""
K3_LAUNCH = f"grid=(256,1,1) block=(256,1,1) lds={18*CH}"
```

```python
S = 2048; D = 576; H = 32; DH = 18; W = 256
QM_OFF = 0x000000
KM_OFF = 0x400000
QR_OFF = 0x800000
KR_OFF = 0x880000
VT_OFF = 0x900000
VT_CHUNK = 304
VT_HEAD = 256 * VT_CHUNK
VT_BR = 32 * VT_HEAD
O_OFF = 0xE00000
O_BR = S * D * 2
M_HEAD = 65536
M_BR = 32 * M_HEAD
R_HEAD = 8192
R_BR = 32 * R_HEAD
WS_USED = O_OFF + 2 * O_BR
QSCALE = (18 ** -0.5) * 1.4426950408889634
def pi(m):
    return (m & ~12) | ((m & 4) << 1) | ((m & 8) >> 1)
```

```python
import sys
from layout import *
import hazards
NAME = "concat_heads__mha_block__sliding_block__prompt"
HEADER = open("cdna_kernels/%s.s.ref" % NAME).read().split("; Override launch geometry")[0]
def build(kernels, path):
    out = HEADER
    if len(kernels) == 1 and kernels[0][0] == NAME + "_kernel":
        out += "; @launch %s\n" % kernels[0][3]
    else:
        for k in kernels:
            out += "; @launch kernel=%s %s\n" % (k[0], k[3])
    out += '.amdgcn_target "amdgcn-amd-amdhsa--gfx950"\n.text\n'
    for k in kernels:
        out += ".globl %s\n" % k[0] + hazards.fix(k[1], report=False)[0] + "\n"
    out += '.section .rodata,"a"\n'
    for k in kernels:
        out += ".p2align 6\n" + k[2].format(name=k[0]).strip() + "\n"
    open(path, "w").write(out)
if __name__ == "__main__":
    which = sys.argv[1]
    path = sys.argv[2]
    diag = len(sys.argv) > 3 and sys.argv[3] == 'diag'
    ks = []
    if "1" in which:
        import k1; ks.append(("qkv_kernel", k1.gen_k1("qkv_kernel", diag), k1.K1_DESC, k1.K1_LAUNCH))
    if "2" in which:
        import k2; ks.append(("attn_kernel", k2.gen_k2("attn_kernel", diag), k2.K2_DESC, k2.K2_LAUNCH))
    if "3" in which:
        import k3; ks.append(("proj_kernel", k3.gen_k3("proj_kernel", diag), k3.K3_DESC, k3.K3_LAUNCH))
    build(ks, path)
```

```python
from asm import *
from layout import *

NS = 6
STG = 18432
XB = 6 * STG
XSTG = 16384
NCH = 18
OOB = 0x80000000

ACC = 0
FX = [112, 156]
FW = [128, 172]
AW0, AW1, AR, AX = 200, 202, 204, 206
VQ, VK, VV, VR, VSC = 212, 213, 214, 215, 216
T = 220
PF = 236
sW, sBr, sMt, sNg = 3, 12, 13, 14
sA, sB, sC = 15, 16, 17
sX, sWq = 20, 24

def acc(n, tt): return ACC + (n * 4 + tt) * 4

def pi16(a, dst, src, tmp):
    a(f"v_and_b32 v{tmp}, 4, v{src}")
    a(f"v_and_b32 v{dst}, 0xfffffff3, v{src}")
    a(f"v_lshl_or_b32 v{dst}, v{tmp}, 1, v{dst}")
    a(f"v_and_b32 v{tmp}, 8, v{src}")
    a(f"v_lshrrev_b32 v{tmp}, 1, v{tmp}")
    a(f"v_or_b32 v{dst}, v{dst}, v{tmp}")

import os
EXP = os.environ.get('K1EXP','stag,nopf')
WROW = 576
def gen_loader(a, hi, diag=False):
    ld = diag and 'ldiag' in EXP
    nW = 4 if hi else 5
    VM = [1, 2, 3, 4, 5]; VX = 6; VT = 8
    t = 10
    a("v_and_b32 v0, 63, v0")
    a(f"s_sub_u32 s{sW}, s{sW}, 4")
    a(f"v_lshrrev_b32 v{t}, 3, v0")
    a(f"s_lshl_b32 s{sB}, s{sMt}, 7")
    a(f"s_lshl_b32 s{sC}, s{sW}, 3")
    a(f"s_add_u32 s{sB}, s{sB}, s{sC}")
    a(f"v_add_u32 v{t}, s{sB}, v{t}")
    a(f"v_bfe_u32 v{t+1}, v{t}, 1, 3")
    a(f"v_mul_u32_u24 v{t}, 1152, v{t}")
    a(f"v_and_b32 v{t+2}, 7, v0")
    a(f"v_xor_b32 v{t+1}, v{t+1}, v{t+2}")
    a(f"v_lshl_add_u32 v{VX}, v{t+1}, 4, v{t}")
    a(f"s_mul_i32 s{sA}, s{sNg}, 144")
    a(f"s_and_b32 s39, s{sA}, 63")
    a(f"s_andn2_b32 s{sA}, s{sA}, 63")
    a(f"s_add_u32 s40, s39, 144")
    for q in range(nW):
        a(f"s_lshl_b32 s{sB}, s{sW}, 6")
        a(f"s_add_u32 s{sB}, s{sB}, {256*q}")
        a(f"v_add_u32 v{t}, s{sB}, v0")
        a(f"v_mul_u32_u24 v{t+1}, 1821, v{t}")
        a(f"v_lshrrev_b32 v{t+1}, 16, v{t+1}")
        a(f"v_mul_u32_u24 v{t+2}, 36, v{t+1}")
        a(f"v_sub_u32 v{t+2}, v{t}, v{t+2}")
        a(f"v_lshrrev_b32 v{t+3}, 2, v{t+1}")
        a(f"v_and_b32 v{t+3}, 2, v{t+3}")
        a(f"v_xor_b32 v{t+2}, v{t+2}, v{t+3}")
        a(f"v_mul_u32_u24 v{t+3}, 43, v{t+2}")
        a(f"v_lshrrev_b32 v{t+3}, 9, v{t+3}")
        a(f"v_mul_u32_u24 v{t+4}, 12, v{t+3}")
        a(f"v_sub_u32 v{t+4}, v{t+2}, v{t+4}")
        a(f"v_lshlrev_b32 v{t+4}, 4, v{t+4}")
        a(f"v_mul_u32_u24 v{t+3}, 1152, v{t+3}")
        a(f"v_mul_u32_u24 v{t+5}, 3456, v{t+1}")
        a(f"v_add3_u32 v{t+5}, v{t+5}, v{t+3}, v{t+4}")
        a(f"v_add_u32 v{t+5}, s{sA}, v{t+5}")
        a(f"v_cmp_le_u32 vcc, s39, v{t+4}")
        a(f"v_cmp_gt_u32 s[42:43], s40, v{t+4}")
        a(f"v_bfrev_b32 v{t+7}, 1")
        a("s_and_b64 vcc, vcc, s[42:43]")
        a("s_nop 1")
        a(f"v_cndmask_b32 v{VM[q]}, v{t+7}, v{t+5}, vcc")
    sM = [30, 31, 32, 33, 34]; sXd = 35
    a(f"s_lshl_b32 s{sB}, s{sW}, 10")
    for q in range(nW): a(f"s_add_u32 s{sM[q]}, s{sB}, {4096*q}")
    a(f"s_add_u32 s{sXd}, s{sB}, {XB}")
    sKW, sKX = 37, 38
    if ld: diag_mark(a, 0)
    a("s_waitcnt lgkmcnt(0)")
    select_ptrs(a)
    STAG = 'stag' in EXP.split(',')
    sCC = 51
    if STAG:
        a(f"s_bfe_u32 s{sA}, s2, 0x30003")
        a(f"s_bfe_u32 s{sB}, s2, 0x20006")
        a(f"s_mul_i32 s{sB}, s{sB}, {os.environ.get('K1STB', '5')}")
        a(f"s_lshr_b32 s{sB}, s{sB}, 1")
        a(f"s_add_u32 s{sCC}, s{sA}, s{sB}")
        a(f"s_cmp_ge_u32 s{sCC}, 9")
        a(f"s_cselect_b32 s{sA}, 9, 0")
        a(f"s_sub_u32 s{sCC}, s{sCC}, s{sA}")
        a(f"s_lshl_b32 s{sCC}, s{sCC}, 1")
    sCX = 52
    if STAG: a(f"s_lshr_b32 s{sCX}, s{sCC}, 1")
    def issue_w(c):
        st = (c % NS) * STG
        if STAG:
            a(f"s_mul_i32 s{sKW}, s{sCC}, {32 * 3456}")
            a(f"s_add_u32 s{sCC}, s{sCC}, 1")
            a(f"s_cmp_eq_u32 s{sCC}, {NCH}")
            a(f"s_cselect_b32 s{sCC}, 0, s{sCC}")
        else:
            a(f"s_mov_b32 s{sKW}, {c * 32 * 3456}")
        for q in range(0 if 'now' in EXP else nW):
            a(f"s_add_u32 m0, s{sM[q]}, {st}")
            a("s_nop 0")
            a.vmem(f"buffer_load_dwordx4 v{VM[q]}, s[{sWq}:{sWq+3}], s{sKW} offen {os.environ.get('K1WB', '')} lds", f"w{c}")
    def issue_x(sl):
        st = (sl % 3) * XSTG
        if STAG:
            a(f"s_lshl_b32 s{sKX}, s{sCX}, 7")
            a(f"s_add_u32 s{sCX}, s{sCX}, 1")
            a(f"s_cmp_eq_u32 s{sCX}, {NCH//2}")
            a(f"s_cselect_b32 s{sCX}, 0, s{sCX}")
        else:
            a(f"s_mov_b32 s{sKX}, {sl * 128}")
        for q in range(4):
            a(f"s_add_u32 m0, s{sXd}, {st + 4096*q}")
            if q: a(f"s_add_u32 s{sKX}, s{sKX}, {32*1152}")
            else: a("s_nop 0")
            a.vmem(f"buffer_load_dwordx4 v{VX}, s[{sX}:{sX+3}], s{sKX} offen {os.environ.get('K1XB', '')} lds", f"x{sl}")
    a.vm_reset()
    PD = int(os.environ.get('K1PD', '3'))
    items = [("x", 0, -1), ("w", 0, -1), ("w", 1, -1), ("x", 1, -1), ("w", 2, -1), ("w", 3, -1), ("x", 2, -1), ("w", 4, -1), ("w", 5, -1)]
    for c in range(6, NCH):
        if c % 2 == 1 and (c - 1) // 2 < NCH // 2: items.append(("x", (c - 1) // 2, c - 5))
        items.append(("w", c, c - 5))
    def emit(it):
        if it[0] == "x":
            if 'nox' not in EXP: issue_x(it[1])
        else: issue_w(it[1])
    pos = 0; nw_ = 0
    while nw_ < PD:
        emit(items[pos]); nw_ += items[pos][0] == "w"; pos += 1
    if ld: diag_mark(a, 1)
    for b in range(NCH):
        tags = [f"w{b}"] + ([f"x{b//2}"] if b % 2 == 0 else [])
        tags = [t_ for t_ in tags if t_ in a.vm]
        if tags:
            last = max(tags, key=lambda t_: max(i for i, v in enumerate(a.vm) if v == t_))
            a.wait_vm(last)
        if ld and b == 0: diag_mark(a, 2)
        a("s_barrier")
        k = 0
        while pos < len(items) and items[pos][2] <= b and k < 2:
            emit(items[pos]); k += items[pos][0] == "w"; pos += 1
    assert pos == len(items)
    if ld:
        a("s_load_dwordx2 s[4:5], s[0:1], 64")
        a("s_waitcnt lgkmcnt(0)")
        diag_end(a, 0, sW, 4, 16, waves=8)
    a("s_endpgm")

def select_ptrs(a):
    a(f"s_cmp_eq_u32 s{sBr}, 0")
    a(f"s_cselect_b32 s{sX}, s4, s8")
    a(f"s_cselect_b32 s{sX+1}, s5, s9")
    a(f"s_cselect_b32 s{sWq}, s6, s10")
    a(f"s_cselect_b32 s{sWq+1}, s7, s11")
    a(f"s_and_b32 s{sX+1}, s{sX+1}, 0xffff")
    a(f"s_and_b32 s{sWq+1}, s{sWq+1}, 0xffff")
    a(f"s_mov_b32 s{sX+2}, {S*D*2}")
    a(f"s_mov_b32 s{sX+3}, 0x00020000")
    a(f"s_mov_b32 s{sWq+2}, {D*3*D*2}")
    a(f"s_mov_b32 s{sWq+3}, 0x00020000")

sP, sPS = 56, 60
VTO, VTD = 238, 239
def gen_touch_setup(a):
    t = T; j = 62
    a(f"s_lshr_b32 s{j}, s2, 3")
    a(f"v_and_b32 v{t}, 15, v0")
    a(f"s_lshl_b32 s{sB}, s{sW}, 4")
    a(f"v_add_u32 v{t}, s{sB}, v{t}")
    a(f"s_lshl_b32 s{sB}, s{j}, 6")
    a(f"s_cmp_ge_u32 s{j}, 16")
    a("s_cbranch_scc1 K1_PF_W")
    a(f"s_and_b32 s{sA}, s2, 1")
    a(f"s_lshl_b32 s{sA}, s{sA}, 10")
    a(f"s_add_u32 s{sA}, s{sA}, s{sB}")
    a(f"v_add_u32 v{t}, s{sA}, v{t}")
    a(f"v_mul_u32_u24 v{t}, 1152, v{t}")
    a(f"s_mov_b32 s{sPS+1}, 128")
    a("s_waitcnt lgkmcnt(0)")
    a(f"s_cmp_eq_u32 s{sBr}, 0")
    a(f"s_cselect_b32 s{sP}, s4, s8")
    a(f"s_cselect_b32 s{sP+1}, s5, s9")
    a(f"s_mov_b32 s{sP+2}, {S*D*2}")
    a("s_branch K1_PF_GO")
    a.label("K1_PF_W")
    a(f"s_sub_u32 s{sB}, s{sB}, 1024")
    a(f"v_add_u32 v{t}, s{sB}, v{t}")
    a(f"v_mul_u32_u24 v{t+1}, 4370, v{t}")
    a(f"v_lshrrev_b32 v{t+1}, 16, v{t+1}")
    a(f"v_mul_u32_u24 v{t+2}, 15, v{t+1}")
    a(f"v_sub_u32 v{t+2}, v{t}, v{t+2}")
    a(f"v_mul_u32_u24 v{t+3}, 52, v{t+2}")
    a(f"v_lshrrev_b32 v{t+3}, 8, v{t+3}")
    a(f"v_mul_u32_u24 v{t+4}, {1152 - 640}, v{t+3}")
    a(f"v_lshl_add_u32 v{t+4}, v{t+2}, 7, v{t+4}")
    a(f"v_mul_u32_u24 v{t+5}, 3456, v{t+1}")
    a(f"s_bfe_u32 s{sA}, s2, 0x10001")
    a(f"s_lshl_b32 s{sA}, s{sA}, 9")
    a(f"v_add3_u32 v{t+5}, v{t+5}, v{t+4}, s{sA}")
    a(f"v_cmp_gt_u32 vcc, 64, v{t+1}")
    a(f"v_bfrev_b32 v{t}, 1")
    a(f"s_mov_b32 s{sPS+1}, {64*3456}")
    a(f"v_cndmask_b32 v{t}, v{t}, v{t+5}, vcc")
    a("s_waitcnt lgkmcnt(0)")
    a(f"s_cmp_eq_u32 s{sBr}, 0")
    a(f"s_cselect_b32 s{sP}, s6, s10")
    a(f"s_cselect_b32 s{sP+1}, s7, s11")
    a(f"s_mov_b32 s{sP+2}, {D*3*D*2}")
    a.label("K1_PF_GO")
    a(f"s_and_b32 s{sP+1}, s{sP+1}, 0xffff")
    a(f"s_mov_b32 s{sP+3}, 0x00020000")
    a(f"v_bfrev_b32 v{t+1}, 1")
    a(f"v_cmp_gt_u32 vcc, 16, v{t+8}")
    a("s_nop 1")
    a(f"v_cndmask_b32 v{VTO}, v{t+1}, v{t}, vcc")
    for sl in range(PF0): touch(a, sl)

PF = 'nopf' not in EXP
PF0 = int(os.environ.get('K1PF0', '5'))
def touch(a, sl):
    if not PF or sl >= 9: return
    a(f"s_mul_i32 s{sPS}, s{sPS+1}, {sl}")
    a(f"buffer_load_dword v{VTD}, v{VTO}, s[{sP}:{sP+3}], s{sPS} offen")

def gen_consumer(a, nw, diag):
    t = T
    L = 217
    a(f"v_and_b32 v{L}, 63, v0")
    a(f"s_and_b32 s{sC}, s{sW}, 1")
    a(f"v_lshrrev_b32 v{t}, 4, v{L}")
    a(f"v_bfe_u32 v{t+1}, v{L}, 2, 2")
    a(f"v_and_b32 v{t+2}, 3, v{L}")
    a(f"v_lshl_add_u32 v{t+3}, v{t}, 3, v{t+1}")
    a(f"v_mul_u32_u24 v{t+3}, {WROW}, v{t+3}")
    a(f"v_and_b32 v{t+5}, 1, v{t}")
    a(f"v_lshlrev_b32 v{t+5}, 5, v{t+5}")
    a(f"s_mul_i32 s{sA}, s{sNg}, 144")
    a(f"s_and_b32 s{sA}, s{sA}, 63")
    for jj, dst in ((0, AW0), (1, AW1)):
        a(f"s_add_u32 s{sB}, s{sA}, {72*nw + 40*jj}")
        a(f"v_lshl_add_u32 v{t+6}, v{t+2}, 3, s{sB}")
        a(f"v_xor_b32 v{t+6}, v{t+6}, v{t+5}")
        a(f"v_add_u32 v{dst}, v{t+6}, v{t+3}")
    a(f"v_and_b32 v{t+7}, 1, v{t+2}")
    a(f"v_mul_u32_u24 v{t+7}, 72, v{t+7}")
    a(f"s_add_u32 s{sB}, s{sA}, 32")
    a(f"v_add_u32 v{t+7}, s{sB}, v{t+7}")
    a(f"v_xor_b32 v{t+7}, v{t+7}, v{t+5}")
    if nw == 0:
        a(f"v_lshrrev_b32 v{t+4}, 1, v{t+2}")
        a(f"v_mul_u32_u24 v{t+4}, 192, v{t+4}")
        a(f"v_add3_u32 v{AR}, v{t+7}, v{t+3}, v{t+4}")
    else:
        a(f"v_add_u32 v{t+7}, 384, v{t+7}")
        a(f"v_add_u32 v{AR}, v{t+7}, v{t+3}")
    a(f"v_and_b32 v{t+6}, 15, v{L}")
    a(f"v_bfe_u32 v{t+7}, v{L}, 1, 3")
    a(f"v_xor_b32 v{t+7}, v{t+7}, v{t}")
    a(f"v_lshlrev_b32 v{t+7}, 4, v{t+7}")
    a(f"v_lshl_add_u32 v{t+7}, v{t+6}, 7, v{t+7}")
    a(f"s_lshl_b32 s{sA}, s{sC}, 13")
    a(f"s_add_u32 s{sA}, s{sA}, {XB}")
    a(f"v_add_u32 v{AX}, s{sA}, v{t+7}")
    a(f"v_xor_b32 v{AX+1}, 64, v{AX}")
    for base in (AW0, AW1, AR):
        a(f"v_add_u32 v{base+1}, {3*STG}, v{base}")
    a(f"v_lshlrev_b32 v{VQ}, 4, v{L}")
    pi16(a, t + 8, L, t + 9)
    a(f"v_lshlrev_b32 v{VK}, 4, v{t+8}")
    a(f"v_and_b32 v{t+9}, 1, v{t}")
    a(f"v_lshrrev_b32 v{t+10}, 1, v{t}")
    a(f"v_lshl_add_u32 v{t+9}, v{t+9}, 1, v{t+10}")
    a(f"v_mul_u32_u24 v{t+9}, {VT_CHUNK}, v{t+9}")
    a(f"v_lshl_add_u32 v{VV}, v{t+6}, 4, v{t+9}")
    if nw == 0:
        a(f"v_and_b32 v{t+10}, 15, v{t+8}")
        a(f"v_cmp_gt_u32 vcc, 32, v{L}")
        a(f"v_cndmask_b32 v{t+10}, v{t+10}, v{t+6}, vcc")
        a(f"v_and_b32 v{t+11}, 1, v{t}")
        a(f"v_lshlrev_b32 v{t+11}, 14, v{t+11}")
        a(f"v_lshl_add_u32 v{t+11}, v{t+10}, 2, v{t+11}")
        a(f"v_add_u32 v{t+10}, {KR_OFF - QR_OFF}, v{t+11}")
        a(f"v_cndmask_b32 v{VR}, v{t+10}, v{t+11}, vcc")
        a(f"s_mov_b32 s{sA}, {f2u(QSCALE):#x}")
        a(f"v_mov_b32 v{t+10}, s{sA}")
        a(f"v_cndmask_b32 v{VSC}, 1.0, v{t+10}, vcc")
    else:
        a(f"v_lshrrev_b32 v{t+10}, 1, v{t+6}")
        a(f"v_and_b32 v{t+11}, 1, v{t+6}")
        a(f"v_and_b32 v{t+12}, 2, v{t+6}")
        a(f"v_cmp_eq_u32 vcc, 0, v{t+12}")
        a(f"v_add_u32 v{t+12}, 16, v{t+11}")
        a("s_nop 0")
        a(f"v_cndmask_b32 v{t+11}, v{t+11}, v{t+12}, vcc")
        a(f"v_subrev_u32 v{t+12}, 8, v{t+6}")
        a(f"v_cmp_gt_u32 vcc, 8, v{t+6}")
        a("s_nop 1")
        a(f"v_cndmask_b32 v{t+10}, v{t+12}, v{t+10}, vcc")
        a(f"v_cndmask_b32 v{t+11}, 18, v{t+11}, vcc")
        a(f"s_mov_b32 s{sA}, {VT_HEAD}")
        a(f"v_mul_lo_u32 v{t+10}, v{t+10}, s{sA}")
        a(f"v_lshl_add_u32 v{t+10}, v{t+11}, 4, v{t+10}")
        a(f"v_add_u32 v{t+10}, v{t+10}, v{t+9}")
        a(f"v_bfrev_b32 v{t+11}, 1")
        a(f"v_cmp_gt_u32 s[40:41], 12, v{t+6}")
        a(f"v_cndmask_b32 v{VR}, v{t+11}, v{t+10}, s[40:41]")
        a("s_mov_b64 s[42:43], vcc")
    sQ, sK, sV, sR0, sR1 = 44, 45, 46, 47, 48
    a(f"s_lshl_b32 s{sA}, s{sNg}, 2")
    a(f"s_add_u32 s{sA}, s{sA}, {2*nw}")
    a(f"s_lshl_b32 s{sB}, s{sMt}, 1")
    a(f"s_add_u32 s{sB}, s{sB}, s{sC}")
    a(f"s_lshl_b32 s{sQ}, s{sA}, 16")
    a(f"s_lshl_b32 s{sK}, s{sB}, 11")
    a(f"s_add_u32 s{sQ}, s{sQ}, s{sK}")
    a(f"s_lshl_b32 s{sK}, s{sBr}, 21")
    a(f"s_add_u32 s{sQ}, s{sQ}, s{sK}")
    a(f"s_add_u32 s{sK}, s{sQ}, {KM_OFF}")
    a(f"s_mul_i32 s{sV}, s{sA}, {VT_HEAD}")
    a(f"s_mul_i32 s{sR0}, s{sB}, {8*VT_CHUNK}")
    a(f"s_add_u32 s{sV}, s{sV}, s{sR0}")
    a(f"s_mul_i32 s{sR0}, s{sBr}, {VT_BR}")
    a(f"s_add_u32 s{sV}, s{sV}, s{sR0}")
    a(f"s_add_u32 s{sV}, s{sV}, {VT_OFF}")
    if nw == 0:
        a(f"s_lshl_b32 s{sR0}, s{sA}, 13")
        a(f"s_lshl_b32 s{sR1}, s{sB}, 8")
        a(f"s_add_u32 s{sR0}, s{sR0}, s{sR1}")
        a(f"s_lshl_b32 s{sR1}, s{sBr}, 18")
        a(f"s_add_u32 s{sR0}, s{sR0}, s{sR1}")
        a(f"s_add_u32 s{sR0}, s{sR0}, {QR_OFF}")
        a(f"s_add_u32 s{sR1}, s{sR0}, {R_HEAD}")
    else:
        a(f"s_sub_u32 s{sR0}, s{sV}, {2*VT_HEAD}")
    sQ1, sK1, sV1 = 49, 50, 51
    a(f"s_add_u32 s{sQ1}, s{sQ}, {M_HEAD}")
    a(f"s_add_u32 s{sK1}, s{sK}, {M_HEAD}")
    a(f"s_add_u32 s{sV1}, s{sV}, {VT_HEAD}")
    a(f"s_mov_b32 s52, {f2u(QSCALE):#x}")
    a(f"s_mov_b32 s53, {f2u(QSCALE):#x}")
    a("s_load_dwordx2 s[20:21], s[0:1], 64")
    def reads(c):
        buf = c % 2; st = c % NS
        sset, so = st // 3, (st % 3) * STG
        out = []
        xs = [f"ds_read_b128 {vr(FX[buf]+4*tt,4)}, v{AX + c % 2} offset:{((c // 2) % 3) * XSTG + tt*2048}" for tt in range(4)]
        ws = []
        for n in range(7):
            for rd in range(2):
                d = FW[buf] + 4*n + 2*rd
                if n < 6:
                    ad = (AW0 if n % 2 == 0 else AW1) + sset
                    ws.append(f"ds_read_b64_tr_b16 {vr(d,2)}, v{ad} offset:{so + (n//2)*192 + rd*4*WROW}")
                else:
                    ws.append(f"ds_read_b64_tr_b16 {vr(d,2)}, v{AR+sset} offset:{so + rd*4*WROW}")
        return xs[:1] + ws[:2] + xs[1:] + ws[2:]
    def mfmas(c):
        buf = c % 2
        out = []
        for n in range(7):
            for tt in range(4):
                w = vr(FW[buf] + 4*n, 4); x = vr(FX[buf] + 4*tt, 4)
                dt = (n < 4) or (n == 6 and nw == 0)
                A, B = (w, x) if dt else (x, w)
                cc = "0" if c == 0 else vr(acc(n, tt), 4)
                out.append(f"v_mfma_f32_16x16x32_bf16 {vr(acc(n,tt),4)}, {A}, {B}, {cc}")
        return out
    a("s_barrier")
    if diag: diag_mark(a, 0)
    for r in reads(0): a(r)
    for c in range(NCH):
        m = mfmas(c)
        a("s_waitcnt lgkmcnt(0)")
        if c + 1 < NCH:
            rd = reads(c + 1)
            for i in range(2): a(m[i])
            a("s_barrier")
            if c % 2 == 1: touch(a, PF0 + c // 2)
            if diag and 'tl' in EXP.split(',') and c % 2 == 0: a(f"s_memtime s[{64 + c}:{65 + c}]")
            k = 0
            for i in range(2, 28):
                if 'nomfma' not in EXP: a(m[i])
                if k < len(rd) and 'noread' not in EXP: a(rd[k]); k += 1
        else:
            for x in m: a(x)
    if diag: diag_mark(a, 1)
    a("s_waitcnt vmcnt(0)")
    a("s_and_b32 s21, s21, 0xffff")
    a(f"s_mov_b32 s22, {WS_USED}")
    a("s_mov_b32 s23, 0x00020000")
    a.nop(6)
    tb = [T, T + 4, T + 8, T + 12]
    cnt = [0]
    def pack_pair(n, tt, scale):
        A = acc(n, tt); B = acc(n, tt + 1)
        d = tb[cnt[0] % 4]; cnt[0] += 1
        if scale:
            for r in (A, A + 2, B, B + 2):
                a(f"v_pk_mul_f32 {vr(r,2)}, {vr(r,2)}, s[52:53]")
        a(f"v_cvt_pk_bf16_f32 v{d}, v{A}, v{A+1}")
        a(f"v_cvt_pk_bf16_f32 v{d+1}, v{A+2}, v{A+3}")
        a(f"v_cvt_pk_bf16_f32 v{d+2}, v{B}, v{B+1}")
        a(f"v_cvt_pk_bf16_f32 v{d+3}, v{B+2}, v{B+3}")
        return d
    def swap(d):
        a.nop(2)
        a(f"v_permlane16_swap_b32 v{d}, v{d+2}")
        a(f"v_permlane16_swap_b32 v{d+1}, v{d+3}")
    for n in range(6):
        tau, jj = n // 2, n % 2
        for tt in (0, 2):
            d = pack_pair(n, tt, tau == 0)
            swap(d)
            if tau < 2:
                base = [[sQ, sQ1], [sK, sK1]][tau][jj]
                a(f"buffer_store_dwordx4 {vr(d,4)}, v{[VQ, VK][tau]}, s[20:23], s{base} offen offset:{(tt//2)*1024}")
            else:
                a(f"buffer_store_dwordx4 {vr(d,4)}, v{VV}, s[20:23], s{[sV, sV1][jj]} offen offset:{tt*2*VT_CHUNK + 32*jj}")
    if nw == 0:
        for tt in range(4):
            A = acc(6, tt)
            d = tb[cnt[0] % 4]; cnt[0] += 1
            for r in range(4):
                a(f"v_mul_f32 v{A+r}, v{A+r}, v{VSC}")
            a(f"v_cvt_pk_bf16_f32 v{d}, v{A}, v{A+1}")
            a(f"v_cvt_pk_bf16_f32 v{d+1}, v{A+2}, v{A+3}")
            a(f"buffer_store_dword v{d}, v{VR}, s[20:23], s{sR0} offen offset:{tt*64}")
            a(f"buffer_store_dword v{d+1}, v{VR}, s[20:23], s{sR1} offen offset:{tt*64}")
    else:
        a(f"v_mov_b32 v{FX[0]}, 0x3f803f80")
        for tt in (0, 2):
            d = pack_pair(6, tt, False)
            for r in range(4):
                a(f"v_cndmask_b32 v{d+r}, v{FX[0]}, v{d+r}, s[42:43]")
            swap(d)
            a(f"buffer_store_dwordx4 {vr(d,4)}, v{VR}, s[20:23], s{sR0} offen offset:{tt*2*VT_CHUNK}")
    if diag and 'ldiag' not in EXP:
        diag_mark(a, 2)
        a("s_waitcnt vmcnt(0)")
        a("s_mov_b32 s4, s20"); a("s_mov_b32 s5, s21")
        if 'tl' in EXP.split(','):
            a("s_waitcnt lgkmcnt(0)")
            a(f"s_mul_i32 s96, s2, 8")
            a(f"s_add_u32 s96, s96, s{sW}")
            a("s_lshl_b32 s96, s96, 6")
            a(f"s_add_u32 s96, s96, {DIAG_OFF + 3 * 0x100000}")
            a("s_add_u32 s98, s4, s96")
            a("s_addc_u32 s99, s5, 0")
            for i in range(9): a(f"s_sub_u32 s{64+2*i}, s{64+2*i}, s90")
            for i in range(9): a(f"v_mov_b32 v{16+i}, s{64+2*i}")
            a("v_mov_b32 v32, 0")
            for q in range(3): a(f"global_store_dwordx4 v32, v[{16+4*q}:{19+4*q}], s[98:99] offset:{16*q}")
        diag_end(a, 0, sW, 4, 16, waves=8)
    a("s_endpgm")

import struct
def f2u(x): return struct.unpack("<I", struct.pack("<f", x))[0]

def gen_k1(name="qkv_kernel", diag=False):
    a = Asm()
    a(f".p2align 8\n.type {name},@function")
    a.label(name)
    a("s_cmp_ge_u32 s2, 256")
    a("s_cbranch_scc1 K1_END")
    if diag: diag_start(a)
    a("s_load_dwordx4 s[4:7], s[0:1], 0")
    a("s_load_dwordx4 s[8:11], s[0:1], 24")
    a("v_lshrrev_b32 v1, 6, v0")
    a(f"s_bfe_u32 s{sBr}, s2, 0x10002")
    a(f"v_readfirstlane_b32 s{sW}, v1")
    a(f"s_and_b32 s{sA}, s2, 1")
    a(f"s_bfe_u32 s{sB}, s2, 0x10001")
    a(f"s_bfe_u32 s{sMt}, s2, 0x30003")
    a(f"s_lshl_b32 s{sA}, s{sA}, 3")
    a(f"s_or_b32 s{sMt}, s{sMt}, s{sA}")
    a(f"s_bfe_u32 s{sNg}, s2, 0x20006")
    a(f"s_lshl_b32 s{sB}, s{sB}, 2")
    a(f"s_or_b32 s{sNg}, s{sNg}, s{sB}")
    a(f"s_cmp_lt_u32 s{sW}, 4")
    a("s_cbranch_scc1 K1_CONS")
    a(f"s_cmp_ge_u32 s{sW}, 6")
    a("s_cbranch_scc1 K1_LOADER1")
    gen_loader(a, 0, diag)
    a.label("K1_LOADER1")
    gen_loader(a, 1, diag)
    a.label("K1_CONS")
    if PF:
        a(f"v_and_b32 v{T+8}, 63, v0")
        gen_touch_setup(a)
    a(f"s_cmp_ge_u32 s{sW}, 2")
    a("s_cbranch_scc1 K1_CONS1")
    gen_consumer(a, 0, diag)
    a.label("K1_CONS1")
    gen_consumer(a, 1, diag)
    a.label("K1_END")
    a("s_endpgm")
    return a.text()

K1_DESC = """
.amdhsa_kernel {name}
  .amdhsa_next_free_vgpr 240
  .amdhsa_next_free_sgpr 102
  .amdhsa_accum_offset 240
  .amdhsa_group_segment_fixed_size 0
  .amdhsa_kernarg_size 72
  .amdhsa_user_sgpr_count 2
  .amdhsa_user_sgpr_kernarg_segment_ptr 1
  .amdhsa_system_sgpr_workgroup_id_x 1
  .amdhsa_float_denorm_mode_32 3
.end_amdhsa_kernel
"""
K1_LAUNCH = f"grid=(256,1,1) block=(512,1,1) lds={XB + 3*XSTG}"
```

```python
from asm import *
from layout import *

NEG = 0xF149F2CA
vKm, vKr, vV, vQr, vO, vO3, vLW, vLR = 1, 2, 3, 4, 5, 6, 7, 8
T0 = 9
O_ = [16, 32, 48, 64]
S_ = [80, 96]
P_ = 112
QA = [120, 126, 132, 138]
ST = [144, 158, 172]
QB = 186
KB = [192 + 6 * i for i in range(9)]
VB = [16 + 8 * i for i in range(8)] + [120]
OB = 128
R_ = 144
TA, TB = 156, 168
MD, MF = 144, 160
sSRD = 8
sHead, sG, sW, sPass = 12, 13, 14, 15
sKm = [16, 17, 18, 19]; sKr = 20; sV = [21, 22, 23, 24, 25, 26]
sQm, sQr, sOA, sOB = 27, 28, 29, 30
sT8, sKmB, sKrB, sVB, sQmB, sQrB = 31, 32, 33, 34, 35, 36
sA, sB = 37, 38
sLo = 72
sFail = 39
sCmp = 40

def mfma16(a, d, x, y, c):
    a(f"v_mfma_f32_32x32x16_bf16 {vr(d,16)}, {vr(x,4)}, {vr(y,4)}, {c if isinstance(c,str) else vr(c,16)}")
def mfma8(a, d, x, y, c):
    a(f"v_mfma_f32_32x32x8_bf16 {vr(d,16)}, {vr(x,2)}, {vr(y,2)}, {vr(c,16)}")

def load_k(a, kt, tag):
    st = ST[kt % 3]
    a.vmem(f"buffer_load_dwordx4 {vr(st,4)}, v{vKm}, s[8:11], s{sKm[kt//4]} offen offset:{(kt%4)*1024}", tag)
    a.vmem(f"buffer_load_dword v{st+4}, v{vKr}, s[8:11], s{sKr} offen offset:{kt*128}", tag)
def load_v(a, kt, tag):
    st = ST[kt % 3]
    o = (kt % 3) * 1216
    a.vmem(f"buffer_load_dwordx4 {vr(st+6,4)}, v{vV}, s[8:11], s{sV[kt//3]} offen offset:{o}", tag)
    a.vmem(f"buffer_load_dwordx4 {vr(st+10,4)}, v{vV}, s[8:11], s{sV[kt//3]} offen offset:{o+608}", tag)

def exps(a, s, lo):
    for r in range(lo, lo + 4):
        a(f"v_exp_f32 v{s+r}, v{s+r}")
    a(f"v_cvt_pk_bf16_f32 v{P_+lo//2}, v{s+lo}, v{s+lo+1}")
    a(f"v_cvt_pk_bf16_f32 v{P_+lo//2+1}, v{s+lo+2}, v{s+lo+3}")

def b_tile_index(a, i):
    a(f"s_add_i32 s{sA}, s{sT8}, {i}")
    a(f"s_max_i32 s{sA}, s{sA}, 0")

def normalize_store(a, R, sO, tag, check):
    a(f"v_mov_b32 v{T0}, v{R+10}")
    a(f"v_mov_b32 v{T0+1}, v{R+10}")
    a.nop(2)
    a(f"v_permlane32_swap_b32 v{T0}, v{T0+1}")
    if check:
        a(f"v_add_f32 v{T0+2}, |v{R}|, |v{R+1}|")
        for r in range(2, 10):
            a(f"v_add_f32 v{T0+2}, v{T0+2}, |v{R+r}|")
        a(f"s_mov_b32 s{sA}, 0x1f800000")
        a(f"s_mov_b32 s{sB}, 0x5f800000")
        a(f"v_cmp_le_f32 s[40:41], s{sA}, v{T0}")
        a(f"v_cmp_ge_f32 s[42:43], s{sB}, v{T0}")
        a(f"s_mov_b32 s{sA}, 0x7e800000")
        a(f"v_cmp_gt_f32 s[44:45], s{sA}, v{T0+2}")
    a(f"v_rcp_f32 v{T0}, v{T0}")
    if check:
        a("s_nop 3")
        a("s_and_b64 s[40:41], s[40:41], s[42:43]")
        a("s_and_b64 s[40:41], s[40:41], s[44:45]")
        a("s_cmp_eq_u64 s[40:41], -1")
        a(f"s_cselect_b32 s{sFail}, 0, 1")
    else:
        a.nop(1)
    for r in range(10):
        a(f"v_mul_f32 v{R+r}, v{R+r}, v{T0}")
    a(f"v_cvt_pk_bf16_f32 v{T0+1}, v{R+8}, v{R+9}")
    a(f"v_cvt_pk_bf16_f32 v{T0+3}, v{R}, v{R+1}")
    a(f"v_cvt_pk_bf16_f32 v{T0+4}, v{R+2}, v{R+3}")
    a(f"v_cvt_pk_bf16_f32 v{T0+5}, v{R+4}, v{R+5}")
    a(f"v_cvt_pk_bf16_f32 v{T0+6}, v{R+6}, v{R+7}")
    a.vmem(f"buffer_store_dword v{T0+1}, v{vO3}, s[8:11], s{sO} offen", tag)
    a.vmem(f"buffer_store_dwordx4 {vr(T0+3,4)}, v{vO}, s[8:11], s{sO} offen", tag)

def split_neg_max(a, vm, dst, tmp):
    a(f"v_sub_f32 v{tmp}, 0, v{vm}")
    a(f"v_and_b32 v{tmp+1}, 0xffff0000, v{tmp}")
    a(f"v_sub_f32 v{tmp}, v{tmp}, v{tmp+1}")
    a(f"v_cvt_pk_bf16_f32 v{tmp}, v{tmp+1}, v{tmp}")
    a(f"v_cndmask_b32 v{dst}, v{dst}, v{tmp}, s[{sLo}:{sLo+1}]")

PKV, PKR, PKD = 246, 234, 242
PKS, PKO = 48, 52
def pack_setup(a):
    u, q, nt, c, ng, x = 62, 63, 64, 65, 66, 67
    a("s_load_dwordx2 s[48:49], s[0:1], 16")
    a("s_load_dwordx2 s[50:51], s[0:1], 40")
    a(f"s_lshl_b32 s{u}, s2, 2")
    a(f"s_add_u32 s{u}, s{u}, s{sW}")
    a(f"s_mul_i32 s{q}, s{u}, 52429")
    a(f"s_lshr_b32 s{q}, s{q}, 18")
    a(f"s_mul_i32 s{nt}, s{q}, 5")
    a(f"s_sub_u32 s{nt}, s{u}, s{nt}")
    a(f"s_mul_i32 s{ng}, s{q}, 3641")
    a(f"s_lshr_b32 s{ng}, s{ng}, 16")
    a(f"s_mul_i32 s{c}, s{ng}, 18")
    a(f"s_sub_u32 s{c}, s{q}, s{c}")
    a(f"s_lshl_b32 s{PKO+8}, s{u}, 10")
    a(f"s_add_u32 s{PKO+8}, s{PKO+8}, {WP_OFF}")
    t = T0
    a(f"v_and_b32 v{t}, 15, v0")
    a(f"v_lshrrev_b32 v{t+1}, 4, v0")
    a(f"s_lshl_b32 s{x}, s{nt}, 4")
    a(f"v_add_u32 v{t}, s{x}, v{t}")
    a(f"v_cmp_gt_u32 vcc, 72, v{t}")
    a(f"s_and_b32 s{x}, s{ng}, 7")
    a(f"s_mul_i32 s{x}, s{x}, 144")
    a(f"v_lshl_add_u32 v{t}, v{t}, 1, s{x}")
    a(f"v_lshrrev_b32 v{t+2}, 1, v{t+1}")
    a(f"v_mul_u32_u24 v{t+2}, 18, v{t+2}")
    a(f"v_and_b32 v{t+3}, 1, v{t+1}")
    a(f"v_lshl_add_u32 v{t+2}, v{t+3}, 2, v{t+2}")
    a(f"v_mul_u32_u24 v{t+3}, 72, v{t+1}")
    a(f"s_cmp_lt_u32 s{c}, 16")
    a(f"s_cselect_b64 s[68:69], -1, 0")
    a(f"v_cndmask_b32 v{t+2}, v{t+3}, v{t+2}, s[68:69]")
    a(f"s_mul_i32 s{x}, s{c}, 36")
    a(f"s_sub_u32 s{q}, s{c}, 16")
    a(f"s_mul_i32 s{q}, s{q}, 288")
    a(f"s_add_u32 s{q}, s{q}, 16")
    a(f"s_cmp_lt_u32 s{c}, 16")
    a(f"s_cselect_b32 s{x}, s{x}, s{q}")
    a(f"v_add_u32 v{t+2}, s{x}, v{t+2}")
    a(f"v_mul_u32_u24 v{t+2}, 1152, v{t+2}")
    a(f"v_add_u32 v{t}, v{t}, v{t+2}")
    a(f"v_bfrev_b32 v{t+1}, 1")
    a(f"s_cmp_lt_u32 s{u}, {WP_UNITS}")
    a(f"s_cselect_b64 s[70:71], -1, 0")
    a(f"s_and_b64 vcc, vcc, s[70:71]")
    a(f"v_lshlrev_b32 v{t+2}, 4, v0")
    a(f"v_cndmask_b32 v{PKV}, v{t+1}, v{t}, vcc")
    a(f"v_cndmask_b32 v{PKV+1}, v{t+1}, v{t+2}, s[70:71]")
    for j in range(8):
        m = ((j & 3) + 8 * (j >> 2)) * 1152
        r = ((j >> 1) * 18 + (j & 1)) * 1152
        a(f"s_mov_b32 s{x}, {r}")
        a(f"s_cmp_lt_u32 s{c}, 16")
        a(f"s_cselect_b32 s{PKO+j}, {m}, s{x}")
    a("s_waitcnt lgkmcnt(0)")
    a(f"s_cmp_ge_u32 s{ng}, 8")
    a(f"s_cselect_b32 s{PKS}, s50, s48")
    a(f"s_cselect_b32 s{PKS+1}, s51, s49")
    a(f"s_and_b32 s{PKS+1}, s{PKS+1}, 0xffff")
    a(f"s_mov_b32 s{PKS+2}, {D*D*2}")
    a(f"s_mov_b32 s{PKS+3}, 0x00020000")

def gen_k2(name="attn_kernel", diag=False):
    a = Asm()
    a(f".p2align 8\n.type {name},@function")
    a.label(name)
    a("s_cmp_ge_u32 s2, 512")
    a("s_cbranch_scc1 K2_END")
    if diag: diag_start(a)
    a("s_load_dwordx2 s[4:5], s[0:1], 64")
    a("v_lshrrev_b32 v9, 6, v0")
    a("v_and_b32 v0, 63, v0")
    a(f"v_readfirstlane_b32 s{sW}, v9")
    a("s_and_b32 s3, s2, 7")
    a("s_lshl_b32 s3, s3, 2")
    a(f"s_bfe_u32 s{sHead}, s2, 0x20003")
    a(f"s_or_b32 s{sHead}, s{sHead}, s3")
    a(f"s_lshr_b32 s{sG}, s2, 5")
    a(f"s_mov_b32 s{sPass}, 0")
    a(f"s_mov_b32 s{sLo}, -1")
    a(f"s_mov_b32 s{sLo+1}, 0")
    a(f"v_lshlrev_b32 v{vKm}, 4, v0")
    a(f"v_and_b32 v9, 31, v0")
    a(f"v_lshlrev_b32 v{vKr}, 2, v9")
    a(f"v_lshrrev_b32 v10, 5, v0")
    a(f"v_bfrev_b32 v11, 1")
    a(f"v_mul_u32_u24 v12, 304, v10")
    a(f"v_lshl_add_u32 v12, v9, 4, v12")
    a(f"v_cmp_gt_u32 vcc, 19, v9")
    a(f"v_cmp_gt_u32 s[40:41], 32, v0")
    a(f"v_lshrrev_b32 v13, 4, v9")
    a(f"v_mul_u32_u24 v13, {O_BLK}, v13")
    a(f"v_and_b32 v14, 15, v9")
    a(f"v_lshl_add_u32 v13, v14, 4, v13")
    a(f"v_cndmask_b32 v{vV}, v11, v12, vcc")
    a(f"v_cndmask_b32 v{vQr}, v11, v{vKr}, s[40:41]")
    a(f"v_lshl_add_u32 v{vO}, v10, 8, v13")
    a(f"s_lshr_b32 s{sA}, s{sHead}, 2")
    a(f"s_lshl_b32 s{sA}, s{sA}, 8")
    a(f"s_and_b32 s{sB}, s{sHead}, 3")
    a(f"s_lshl_b32 s{sB}, s{sB}, 2")
    a(f"s_add_u32 s{sA}, s{sA}, s{sB}")
    a(f"s_lshl_b32 s{sB}, s{sHead}, 9")
    a(f"s_sub_u32 s{sA}, s{sA}, s{sB}")
    a(f"s_add_u32 s{sA}, s{sA}, {16*1024}")
    a(f"v_add_u32 v13, s{sA}, v13")
    a(f"v_cndmask_b32 v{vO3}, v11, v13, s[40:41]")
    a(f"s_lshl_b32 s{sA}, s{sHead}, 16")
    a(f"s_lshl_b32 s{sB}, s{sW}, 14")
    a(f"s_add_u32 s{sKm[0]}, s{sA}, s{sB}")
    a(f"s_add_u32 s{sKm[0]}, s{sKm[0]}, {KM_OFF}")
    for j in range(1, 4):
        a(f"s_add_u32 s{sKm[j]}, s{sKm[0]}, {4096*j}")
    a(f"s_add_u32 s{sKmB}, s{sA}, {KM_OFF + M_BR}")
    a(f"s_lshl_b32 s{sB}, s{sG}, 12")
    a(f"s_add_u32 s{sQm}, s{sA}, s{sB}")
    a(f"s_lshl_b32 s{sB}, s{sW}, 10")
    a(f"s_add_u32 s{sQmB}, s{sQm}, s{sB}")
    a(f"s_add_u32 s{sQmB}, s{sQmB}, {QM_OFF + M_BR}")
    a(f"s_lshl_b32 s{sA}, s{sHead}, 13")
    a(f"s_lshl_b32 s{sB}, s{sW}, 11")
    a(f"s_add_u32 s{sKr}, s{sA}, s{sB}")
    a(f"s_add_u32 s{sKr}, s{sKr}, {KR_OFF}")
    a(f"s_add_u32 s{sKrB}, s{sA}, {KR_OFF + R_BR}")
    a(f"s_lshl_b32 s{sB}, s{sG}, 9")
    a(f"s_add_u32 s{sQr}, s{sA}, s{sB}")
    a(f"s_add_u32 s{sQr}, s{sQr}, {QR_OFF}")
    a(f"s_lshl_b32 s{sB}, s{sW}, 7")
    a(f"s_add_u32 s{sQrB}, s{sQr}, s{sB}")
    a(f"s_add_u32 s{sQrB}, s{sQrB}, {R_BR}")
    a(f"s_mul_i32 s{sA}, s{sHead}, {VT_HEAD}")
    a(f"s_add_u32 s{sVB}, s{sA}, {VT_OFF + VT_BR}")
    a(f"s_mul_i32 s{sB}, s{sW}, {16*1216}")
    a(f"s_add_u32 s{sV[0]}, s{sA}, s{sB}")
    a(f"s_add_u32 s{sV[0]}, s{sV[0]}, {VT_OFF}")
    for j in range(1, 6):
        a(f"s_add_u32 s{sV[j]}, s{sV[0]}, {3648*j}")
    a(f"s_lshl_b32 s{sA}, s{sG}, 2")
    a(f"s_add_u32 s{sA}, s{sA}, s{sW}")
    a(f"s_sub_i32 s{sT8}, s{sA}, 8")
    a(f"s_mul_i32 s{sA}, s{sA}, {2*O_BLK}")
    a(f"s_lshl_b32 s{sB}, s{sHead}, 9")
    a(f"s_add_u32 s{sOA}, s{sA}, s{sB}")
    a(f"s_add_u32 s{sOA}, s{sOA}, {O_OFF}")
    a(f"s_add_u32 s{sOB}, s{sOA}, {O_BR}")
    a(f"s_mul_i32 s{sA}, s{sW}, 3072")
    a(f"s_mul_i32 s{sB}, s{sW}, 12288")
    a(f"v_add_u32 v{vLW}, s{sA}, v{vKm}")
    a(f"v_add_u32 v{vLR}, s{sB}, v{vKm}")
    for st in ST:
        a(f"v_mov_b32 v{st+5}, 0x3f803f80")
    for q in QA:
        a(f"v_mov_b32 v{q+5}, 0")
    a("s_waitcnt lgkmcnt(0)")
    a("s_mov_b32 s8, s4")
    a("s_and_b32 s9, s5, 0xffff")
    a(f"s_mov_b32 s10, {WS_USED}")
    a("s_mov_b32 s11, 0x00020000")
    for i in range(4):
        a.vmem(f"buffer_load_dwordx4 {vr(QA[i],4)}, v{vKm}, s[8:11], s{sQm} offen offset:{i*1024}", "QA")
        a.vmem(f"buffer_load_dword v{QA[i]+4}, v{vQr}, s[8:11], s{sQr} offen offset:{i*128}", "QA")
    a.label("K2_A_START")
    for kt in range(3):
        load_k(a, kt, f"K{kt}")
        load_v(a, kt, f"V{kt}")
    pack_setup(a)
    a.wait_vm("K0")
    if diag: diag_mark(a, 0)
    mfma16(a, S_[0], ST[0], QA[0], "0")
    mfma8(a, S_[0], ST[0] + 4, QA[0] + 4, S_[0])
    a.nop(12)
    NT = 64
    for t in range(NT):
        kt, i = divmod(t, 4)
        s = S_[t % 2]; sn = S_[(t + 1) % 2]
        kn, in_ = divmod(t + 1, 4)
        if t == 1:
            for j in range(8):
                a.vmem(f"buffer_load_ushort v{PKR+j}, v{PKV}, s[{PKS}:{PKS+3}], s{PKO+j} offen", "PK")
        if t == 13:
            a.wait_vm("PK")
            for j in range(4):
                a(f"v_lshl_or_b32 v{PKD+j}, v{PKR+2*j+1}, 16, v{PKR+2*j}")
            a.vmem(f"buffer_store_dwordx4 {vr(PKD,4)}, v{PKV+1}, s[8:11], s{PKO+8} offen", "PKS")
        if i == 3 and kt + 3 < 16:
            load_k(a, kt + 3, f"K{kt+3}")
        if i == 1 and kt >= 1 and kt + 2 < 16:
            load_v(a, kt + 2, f"V{kt+2}")
        if i == 2 and 4 <= kt <= 12:
            j = kt - 4
            b_tile_index(a, j)
            a(f"s_lshl_b32 s{sB}, s{sA}, 10")
            a(f"s_add_u32 s{sB}, s{sB}, s{sKmB}")
            a.vmem(f"buffer_load_dwordx4 {vr(KB[j],4)}, v{vKm}, s[8:11], s{sB} offen", "KB")
            a(f"s_lshl_b32 s{sB}, s{sA}, 7")
            a(f"s_add_u32 s{sB}, s{sB}, s{sKrB}")
            a.vmem(f"buffer_load_dword v{KB[j]+4}, v{vKr}, s[8:11], s{sB} offen", "KB")
        if i == 2 and kt == 13:
            a.vmem(f"buffer_load_dwordx4 {vr(QB,4)}, v{vKm}, s[8:11], s{sQmB} offen", "KB")
            a.vmem(f"buffer_load_dword v{QB+4}, v{vQr}, s[8:11], s{sQrB} offen", "KB")
        if t + 1 < NT:
            if in_ == 0:
                a.wait_vm(f"K{kn}")
            mfma16(a, sn, ST[kn % 3], QA[in_], "0")
        exps(a, s, 0)
        if t + 1 < NT:
            mfma8(a, sn, ST[kn % 3] + 4, QA[in_] + 4, sn)
        exps(a, s, 4)
        if t > 0:
            kp, ip = divmod(t - 1, 4)
            mfma16(a, O_[ip], ST[kp % 3] + 10, P_ + 4, O_[ip])
        exps(a, s, 8)
        if i == 0:
            a.wait_vm(f"V{kt}")
        mfma16(a, O_[i], ST[kt % 3] + 6, P_, "0" if kt == 0 else O_[i])
        exps(a, s, 12)
    if diag: diag_mark(a, 1)
    a.nop(2)
    mfma16(a, O_[3], ST[15 % 3] + 10, P_ + 4, O_[3])
    a.nop(12)
    for i in range(4):
        for q in range(3):
            a(f"ds_write_b128 v{vLW}, {vr(O_[i]+4*q,4)} offset:{i*12288 + q*1024}")
    a("s_waitcnt lgkmcnt(0)")
    a("s_barrier")
    a(f"s_cmp_lg_u32 s{sPass}, 0")
    a("s_cbranch_scc1 K2_SKIP_VB")
    for j in range(9):
        b_tile_index(a, j)
        a(f"s_mul_i32 s{sB}, s{sA}, 1216")
        a(f"s_add_u32 s{sB}, s{sB}, s{sVB}")
        a.vmem(f"buffer_load_dwordx4 {vr(VB[j],4)}, v{vV}, s[8:11], s{sB} offen", f"VB{j}")
        a.vmem(f"buffer_load_dwordx4 {vr(VB[j]+4,4)}, v{vV}, s[8:11], s{sB} offen offset:608", f"VB{j}")
    a.label("K2_SKIP_VB")
    for q in range(3):
        a(f"ds_read_b128 {vr(R_+4*q,4)}, v{vLR} offset:{q*1024}")
    for q in range(3):
        a(f"ds_read_b128 {vr(TA+4*q,4)}, v{vLR} offset:{3072 + q*1024}")
    for q in range(3):
        a(f"ds_read_b128 {vr(TB+4*q,4)}, v{vLR} offset:{6144 + q*1024}")
    a("s_waitcnt lgkmcnt(3)")
    for r in range(11):
        a(f"v_add_f32 v{R_+r}, v{R_+r}, v{TA+r}")
    for q in range(3):
        a(f"ds_read_b128 {vr(TA+4*q,4)}, v{vLR} offset:{9216 + q*1024}")
    a("s_waitcnt lgkmcnt(3)")
    for r in range(11):
        a(f"v_add_f32 v{R_+r}, v{R_+r}, v{TB+r}")
    a("s_waitcnt lgkmcnt(0)")
    for r in range(11):
        a(f"v_add_f32 v{R_+r}, v{R_+r}, v{TA+r}")
    normalize_store(a, R_, sOA, "OA", check=True)
    a(f"s_cmp_lg_u32 s{sPass}, 0")
    a("s_cbranch_scc1 K2_FIN")
    a(f"v_mov_b32 v{T0}, s{sFail}")
    a(f"s_lshl_b32 s{sA}, s{sW}, 2")
    a(f"s_add_u32 s{sA}, s{sA}, 49152")
    a(f"v_mov_b32 v{T0+1}, s{sA}")
    a(f"ds_write_b32 v{T0+1}, v{T0}")
    if diag: diag_mark(a, 2)
    a(f"v_lshrrev_b32 v{T0}, 5, v0")
    a(f"v_and_b32 v{T0+1}, 31, v0")
    a(f"v_lshlrev_b32 v{T0}, 3, v{T0}")
    a(f"v_sub_u32 v{T0}, v{T0+1}, v{T0}")
    a(f"v_mov_b32 v{T0+1}, {NEG:#x}")
    kc = [16 * (r >> 3) + 4 * ((r >> 2) & 1) + (r & 3) for r in range(16)]
    for r in range(16):
        a(f"v_cmp_le_i32 s[{sCmp+2*r}:{sCmp+2*r+1}], {kc[r]}, v{T0}")
    for r in range(16):
        a(f"v_cndmask_b32 v{MD+r}, v{T0+1}, 0, s[{sCmp+2*r}:{sCmp+2*r+1}]")
    for r in range(16):
        a(f"v_cndmask_b32 v{MF+r}, 0, v{T0+1}, s[{sCmp+2*r}:{sCmp+2*r+1}]")
    a(f"v_mov_b32 v{T0}, 0x3f803f80")
    a(f"v_mov_b32 v{T0+1}, 0x3f80")
    a(f"v_cndmask_b32 v{QB+5}, v{T0+1}, 0, s[{sLo}:{sLo+1}]")
    for j in range(9):
        a(f"s_add_i32 s{sA}, s{sT8}, {j}")
        a(f"s_cmp_lt_i32 s{sA}, 0")
        a(f"s_cselect_b32 s{sA}, 0xf14a, 0")
        a(f"v_mov_b32 v{T0+1}, s{sA}")
        a(f"v_cndmask_b32 v{KB[j]+5}, v{T0+1}, v{T0}, s[{sLo}:{sLo+1}]")
    a.wait_vm("KB")
    def cmask(j): return MF if j == 0 else (MD if j == 8 else "0")
    mx = [T0, T0 + 1]
    mfma16(a, S_[0], KB[0], QB, cmask(0))
    mfma8(a, S_[0], KB[0] + 4, QB + 4, S_[0])
    for j in range(9):
        s = S_[j % 2]; sn = S_[(j + 1) % 2]
        if j + 1 < 9:
            mfma16(a, sn, KB[j+1], QB, cmask(j + 1))
            mfma8(a, sn, KB[j+1] + 4, QB + 4, sn)
            a.nop(10 if j == 0 else 2)
        else:
            a.nop(4)
        for r in range(0, 16, 4):
            if j == 0 and r == 0:
                a(f"v_max_f32 v{mx[0]}, v{s}, v{s+1}")
                a(f"v_max_f32 v{mx[1]}, v{s+2}, v{s+3}")
            else:
                a(f"v_max3_f32 v{mx[0]}, v{mx[0]}, v{s+r}, v{s+r+1}")
                a(f"v_max3_f32 v{mx[1]}, v{mx[1]}, v{s+r+2}, v{s+r+3}")
    a(f"v_max_f32 v{T0}, v{mx[0]}, v{mx[1]}")
    a(f"v_mov_b32 v{T0+1}, v{T0}")
    a.nop(2)
    a(f"v_permlane32_swap_b32 v{T0}, v{T0+1}")
    a(f"v_max_f32 v{T0}, v{T0}, v{T0+1}")
    split_neg_max(a, T0, QB + 5, T0 + 2)
    a.nop(2)
    mfma16(a, S_[0], KB[0], QB, cmask(0))
    mfma8(a, S_[0], KB[0] + 4, QB + 4, S_[0])
    a.nop(12)
    for j in range(9):
        s = S_[j % 2]; sn = S_[(j + 1) % 2]
        if j + 1 < 9:
            mfma16(a, sn, KB[j+1], QB, cmask(j + 1))
        exps(a, s, 0)
        if j + 1 < 9:
            mfma8(a, sn, KB[j+1] + 4, QB + 4, sn)
        exps(a, s, 4)
        if j > 0:
            mfma16(a, OB, VB[j-1] + 4, P_ + 4, OB)
        exps(a, s, 8)
        a.wait_vm(f"VB{j}")
        mfma16(a, OB, VB[j], P_, "0" if j == 0 else OB)
        exps(a, s, 12)
    a.nop(2)
    mfma16(a, OB, VB[8] + 4, P_ + 4, OB)
    a.nop(12)
    normalize_store(a, OB, sOB, "OB", check=False)
    a("s_waitcnt lgkmcnt(0)")
    a("s_barrier")
    a(f"v_mov_b32 v{T0}, 49152")
    a(f"ds_read_b128 {vr(T0+1+0,4) if False else 'v[12:15]'}, v{T0}")
    a("s_waitcnt lgkmcnt(0)")
    a("v_or_b32 v12, v12, v13")
    a("v_or3_b32 v12, v12, v14, v15")
    a("s_nop 0")
    a(f"v_readfirstlane_b32 s{sA}, v12")
    a("s_nop 3")
    a(f"s_cmp_eq_u32 s{sA}, 0")
    a("s_cbranch_scc1 K2_FIN")
    a("s_waitcnt vmcnt(0)")
    a(f"s_mov_b32 s{sPass}, 1")
    for st in ST:
        a(f"v_mov_b32 v{st+5}, 0x3f803f80")
    for i in range(4):
        a(f"v_mov_b32 v{QA[i]+5}, 0")
        a(f"buffer_load_dwordx4 {vr(QA[i],4)}, v{vKm}, s[8:11], s{sQm} offen offset:{i*1024}")
        a(f"buffer_load_dword v{QA[i]+4}, v{vQr}, s[8:11], s{sQr} offen offset:{i*128}")
    mxs = [T0, T0 + 1, T0 + 2, T0 + 3]
    for i in range(4):
        a(f"v_mov_b32 v{mxs[i]}, 0xff7fffff")
    a(f"s_mov_b32 s{sA}, s{sKm[0]}")
    a(f"s_mov_b32 s{sB}, s{sKr}")
    a(f"s_mov_b32 s{sCmp}, 16")
    a.label("K2_FB_LOOP")
    a(f"buffer_load_dwordx4 {vr(ST[0],4)}, v{vKm}, s[8:11], s{sA} offen")
    a(f"buffer_load_dword v{ST[0]+4}, v{vKr}, s[8:11], s{sB} offen")
    a("s_waitcnt vmcnt(0)")
    for i in range(4):
        mfma16(a, S_[0], ST[0], QA[i], "0")
        mfma8(a, S_[0], ST[0] + 4, QA[i] + 4, S_[0])
        a.nop(12)
        for r in range(0, 16, 2):
            a(f"v_max3_f32 v{mxs[i]}, v{mxs[i]}, v{S_[0]+r}, v{S_[0]+r+1}")
    a(f"s_add_u32 s{sA}, s{sA}, 1024")
    a(f"s_add_u32 s{sB}, s{sB}, 128")
    a(f"s_sub_u32 s{sCmp}, s{sCmp}, 1")
    a(f"s_cmp_lg_u32 s{sCmp}, 0")
    a("s_cbranch_scc1 K2_FB_LOOP")
    for i in range(4):
        a(f"v_mov_b32 v{T0+4}, v{mxs[i]}")
        a.nop(2)
        a(f"v_permlane32_swap_b32 v{mxs[i]}, v{T0+4}")
        a(f"v_max_f32 v{mxs[i]}, v{mxs[i]}, v{T0+4}")
    a(f"s_lshl_b32 s{sA}, s{sW}, 10")
    a(f"v_add_u32 v{T0+4}, s{sA}, v{vKm}")
    a(f"v_mov_b32 v{S_[0]}, v{mxs[0]}")
    a(f"v_mov_b32 v{S_[0]+1}, v{mxs[1]}")
    a(f"v_mov_b32 v{S_[0]+2}, v{mxs[2]}")
    a(f"v_mov_b32 v{S_[0]+3}, v{mxs[3]}")
    a(f"ds_write_b128 v{T0+4}, {vr(S_[0],4)}")
    a("s_waitcnt lgkmcnt(0)")
    a("s_barrier")
    for ww in range(4):
        a(f"ds_read_b128 {vr(S_[1]+4*ww,4)}, v{vKm} offset:{ww*1024}")
    a("s_waitcnt lgkmcnt(0)")
    for i in range(4):
        a(f"v_max3_f32 v{mxs[i]}, v{S_[1]+i}, v{S_[1]+4+i}, v{S_[1]+8+i}")
        a(f"v_max_f32 v{mxs[i]}, v{mxs[i]}, v{S_[1]+12+i}")
    for i in range(4):
        split_neg_max(a, mxs[i], QA[i] + 5, T0 + 4)
    a("s_barrier")
    a("s_branch K2_A_START")
    a.label("K2_FIN")
    if diag: diag_end(a, 1, sW, 4, 16)
    a.label("K2_END")
    a("s_endpgm")
    return a.text()

K2_DESC = """
.amdhsa_kernel {name}
  .amdhsa_next_free_vgpr 248
  .amdhsa_next_free_sgpr 102
  .amdhsa_accum_offset 248
  .amdhsa_group_segment_fixed_size 0
  .amdhsa_kernarg_size 72
  .amdhsa_user_sgpr_count 2
  .amdhsa_user_sgpr_kernarg_segment_ptr 1
  .amdhsa_system_sgpr_workgroup_id_x 1
  .amdhsa_float_denorm_mode_32 3
.end_amdhsa_kernel
"""
K2_LAUNCH = "grid=(512,1,1) block=(256,1,1) lds=49216"
```

```python
from asm import *
from layout import *
import os

OF = 0
ACC = 144
FW = [184, 204]
VL, VS, VS4 = 224, 225, 226
T = 228
sW, sBr, sMt, sNg = 3, 12, 13, 14
sA, sB, sC = 15, 16, 17
CH = 5120
NQ = 23
PD = int(os.environ.get('K3PD', '8'))
BS = int(os.environ.get('K3BS', '1'))
STB = os.environ.get('K3ST', 'sc1')

def acc(n, tt): return ACC + (n * 2 + tt) * 4

def gen_k3(name="proj_kernel", diag=False):
    a = Asm()
    a(f".p2align 8\n.type {name},@function")
    a.label(name)
    a("s_cmp_ge_u32 s2, 256")
    a("s_cbranch_scc1 K3_END")
    if diag: diag_start(a)
    a("s_load_dwordx2 s[10:11], s[0:1], 64")
    a("s_load_dwordx2 s[8:9], s[0:1], 48")
    a("v_lshrrev_b32 v1, 6, v0")
    a("v_and_b32 v0, 63, v0")
    a(f"v_readfirstlane_b32 s{sW}, v1")
    a(f"v_lshlrev_b32 v{VL}, 4, v0")
    a(f"s_bfe_u32 s{sBr}, s2, 0x10002")
    a(f"s_and_b32 s{sA}, s2, 3")
    a(f"s_lshl_b32 s{sA}, s{sA}, 2")
    a(f"s_bfe_u32 s{sMt}, s2, 0x20003")
    a(f"s_or_b32 s{sMt}, s{sMt}, s{sA}")
    a(f"s_lshr_b32 s{sNg}, s2, 5")
    sO, sOut, sWp, sM0, sT, sBlk = 30, 31, 32, 33, 34, 35
    a(f"s_lshl_b32 s{sBlk}, s{sMt}, 2")
    a(f"s_add_u32 s{sBlk}, s{sBlk}, s{sW}")
    a(f"s_mul_i32 s{sO}, s{sBlk}, {2*O_BLK}")
    a(f"s_mul_i32 s{sB}, s{sBr}, {O_BR}")
    a(f"s_add_u32 s{sO}, s{sO}, s{sB}")
    a(f"s_add_u32 s{sO}, s{sO}, {O_OFF}")
    a(f"s_lshl_b32 s{sB}, s{sBr}, 3")
    a(f"s_add_u32 s{sB}, s{sB}, s{sNg}")
    a(f"s_mul_i32 s{sWp}, s{sB}, {18*CH}")
    a(f"s_lshl_b32 s{sM0}, s{sW}, 10")
    a(f"s_add_u32 s{sWp}, s{sWp}, s{sM0}")
    a(f"s_add_u32 s{sWp}, s{sWp}, {WP_OFF}")
    sWl, sMl = 36, 37
    a(f"s_min_u32 s{sA}, s{sW}, 1")
    a(f"s_sub_u32 s{sA}, s{sW}, s{sA}")
    a(f"s_cmp_ge_u32 s{sW}, 2")
    a(f"s_cselect_b32 s{sA}, s{sA}, 0")
    a(f"s_cmp_eq_u32 s{sW}, 3")
    a(f"s_cselect_b32 s{sA}, 2, s{sA}")
    a(f"s_lshl_b32 s{sA}, s{sA}, 10")
    a(f"s_sub_u32 s{sWl}, s{sWp}, s{sA}")
    a(f"s_sub_u32 s{sMl}, s{sM0}, s{sA}")
    a("s_waitcnt lgkmcnt(0)")
    a("s_mov_b32 s24, s10")
    a("s_and_b32 s25, s11, 0xffff")
    a(f"s_mov_b32 s26, {WS_USED}")
    a("s_mov_b32 s27, 0x00020000")
    def wslot(q):
        base, m = (sWp, sM0) if q < NQ - 1 else (sWl, sMl)
        a(f"s_add_u32 m0, s{m}, {4096*q}")
        a(f"s_add_u32 s{sT}, s{base}, {4096*q}")
        a.vmem(f"buffer_load_dwordx4 v{VL}, s[24:27], s{sT} offen lds", f"w{q}")
    def oload(c, tt):
        off = c * 1024 + tt * O_BLK
        hi, lo = off & ~4095, off & 4095
        if lo == 0 or tt == 1 or c == 0:
            a(f"s_add_u32 s{sO+10+tt}, s{sO}, {hi}")
        a.vmem(f"buffer_load_dwordx4 {vr(OF + (c*2+tt)*4, 4)}, v{VL}, s[24:27], s{sO+10+tt} offen offset:{lo}", f"o{c}")
    qmax = lambda c: min((5 * c + 4) // 4, NQ - 1)
    nq = [0]
    def group(c):
        out = []
        while nq[0] <= qmax(c):
            out.append(lambda q=nq[0]: wslot(q)); nq[0] += 1
        out.append(lambda: oload(c, 0)); out.append(lambda: oload(c, 1))
        return out
    for c in range(PD):
        for f in group(c): f()
    t = T
    a(f"v_bfe_u32 v{t}, v{VL}, 4, 4")
    a(f"v_lshrrev_b32 v{t+1}, 8, v{VL}")
    a(f"v_lshrrev_b32 v{t+2}, 1, v{t+1}")
    a(f"v_and_b32 v{t+3}, 1, v{t+1}")
    a(f"v_lshl_add_u32 v{t+4}, v{t+3}, 4, v{t}")
    a(f"v_mul_u32_u24 v{t+4}, 2304, v{t+4}")
    a(f"v_lshl_add_u32 v{VS}, v{t+2}, 4, v{t+4}")
    a(f"v_bfrev_b32 v{t+5}, 1")
    a(f"v_cmp_gt_u32 vcc, 0x200, v{VL}")
    a(f"v_cndmask_b32 v{VS4}, v{t+5}, v{VS}, vcc")
    a(f"s_mul_i32 s{sOut}, s{sBlk}, {32*2304}")
    a(f"s_mul_i32 s{sB}, s{sBr}, 1152")
    a(f"s_add_u32 s{sOut}, s{sOut}, s{sB}")
    a(f"s_mul_i32 s{sB}, s{sNg}, 144")
    a(f"s_add_u32 s{sOut}, s{sOut}, s{sB}")
    a("s_mov_b32 s44, s8")
    a("s_and_b32 s45, s9, 0xffff")
    a(f"s_mov_b32 s46, {S*1152*2}")
    a("s_mov_b32 s47, 0x00020000")
    def reads(c):
        return [f"ds_read_b128 {vr(FW[c % 2] + 4*n, 4)}, v{VL} offset:{c * CH + n*1024}" if c * CH + n * 1024 < 65536 else
                f"ds_read_b128 {vr(FW[c % 2] + 4*n, 4)}, v{VL+3} offset:{c * CH + n*1024 - 61440}" for n in range(5)]
    a(f"v_add_u32 v{VL+3}, 61440, v{VL}")
    def landed(c):
        a.wait_vm(f"w{qmax(c)}")
    landed(min(BS - 1, 17))
    a("s_barrier")
    if diag: diag_mark(a, 0)
    for r in reads(0): a(r)
    for c in range(18):
        pend = group(c + PD) if c + PD < 18 else []
        a.wait_vm(f"o{c}", "lgkmcnt(0)")
        if c + 1 < 18 and (c + 1) % BS == 0:
            landed(min(c + BS, 17))
            a("s_barrier")
        rd = reads(c + 1) if c + 1 < 18 else []
        k = 0
        for n in range(5):
            for tt in range(2):
                cc = "0" if c == 0 else vr(acc(n, tt), 4)
                a(f"v_mfma_f32_16x16x32_bf16 {vr(acc(n,tt),4)}, {vr(FW[c%2]+4*n,4)}, {vr(OF+(c*2+tt)*4,4)}, {cc}")
                if k < len(rd): a(rd[k]); k += 1
                if pend and (n * 2 + tt) % 2 == 1: pend.pop(0)()
        while pend: pend.pop(0)()
    if diag: diag_mark(a, 1)
    a.nop(8)
    for n in range(5):
        d = T + 4 * (n % 3)
        A = acc(n, 0); B = acc(n, 1)
        a(f"v_cvt_pk_bf16_f32 v{d}, v{A}, v{A+1}")
        a(f"v_cvt_pk_bf16_f32 v{d+1}, v{A+2}, v{A+3}")
        a(f"v_cvt_pk_bf16_f32 v{d+2}, v{B}, v{B+1}")
        a(f"v_cvt_pk_bf16_f32 v{d+3}, v{B+2}, v{B+3}")
        a.nop(2)
        a(f"v_permlane16_swap_b32 v{d}, v{d+2}")
        a(f"v_permlane16_swap_b32 v{d+1}, v{d+3}")
        a(f"buffer_store_dwordx4 {vr(d,4)}, v{VS if n < 4 else VS4}, s[44:47], s{sOut} offen offset:{n*32} {STB}")
    if diag:
        diag_mark(a, 2)
        a("s_waitcnt vmcnt(0)")
        a("s_mov_b32 s4, s24"); a("s_mov_b32 s5, s25")
        diag_end(a, 2, sW, 4, 16)
    a.label("K3_END")
    a("s_endpgm")
    return a.text()

K3_DESC = """
.amdhsa_kernel {name}
  .amdhsa_next_free_vgpr 240
  .amdhsa_next_free_sgpr 102
  .amdhsa_accum_offset 240
  .amdhsa_group_segment_fixed_size 0
  .amdhsa_kernarg_size 72
  .amdhsa_user_sgpr_count 2
  .amdhsa_user_sgpr_kernarg_segment_ptr 1
  .amdhsa_system_sgpr_workgroup_id_x 1
  .amdhsa_float_denorm_mode_32 3
.end_amdhsa_kernel
"""
K3_LAUNCH = f"grid=(256,1,1) block=(256,1,1) lds={18*CH}"
```

```python
S = 2048; D = 576; H = 32; DH = 18; W = 256
QM_OFF = 0x000000
KM_OFF = 0x400000
QR_OFF = 0x800000
KR_OFF = 0x880000
VT_OFF = 0x900000
VT_CHUNK = 304
VT_HEAD = 256 * VT_CHUNK
VT_BR = 32 * VT_HEAD
O_OFF = 0xE00000
O_BR = S * D * 2
M_HEAD = 65536
M_BR = 32 * M_HEAD
R_HEAD = 8192
R_BR = 32 * R_HEAD
O_BLK = 18 * 1024
WP_OFF = 0x1300000
WP_UNITS = 2 * 8 * 18 * 5
import os as _os
WP_CH = 4608 if _os.environ.get('K3C', '1') == '1' else 5120
WS_USED = WP_OFF + WP_UNITS * 1024
def krow(c, g, j):
    if c < 16: return (2 * c + (g >> 1)) * 18 + 4 * (g & 1) + (j & 3) + 8 * (j >> 2)
    return ((c - 16) * 16 + 4 * g + (j >> 1)) * 18 + 16 + (j & 1)
QSCALE = (18 ** -0.5) * 1.4426950408889634
def pi(m):
    return (m & ~12) | ((m & 4) << 1) | ((m & 8) >> 1)
```

```python
from asm import *
from layout import *

NS = 6
STG = 18432
XB = 6 * STG
XSTG = 16384
NCH = 18
OOB = 0x80000000

ACC = 0
FX = [112, 156]
FW = [128, 172]
AW0, AW1, AR, AX = 200, 202, 204, 206
VQ, VK, VV, VR, VSC = 212, 213, 214, 215, 216
T = 220
PF = 236
sW, sBr, sMt, sNg = 3, 12, 13, 14
sA, sB, sC = 15, 16, 17
sX, sWq = 20, 24

def acc(n, tt): return ACC + (n * 4 + tt) * 4

def pi16(a, dst, src, tmp):
    a(f"v_and_b32 v{tmp}, 4, v{src}")
    a(f"v_and_b32 v{dst}, 0xfffffff3, v{src}")
    a(f"v_lshl_or_b32 v{dst}, v{tmp}, 1, v{dst}")
    a(f"v_and_b32 v{tmp}, 8, v{src}")
    a(f"v_lshrrev_b32 v{tmp}, 1, v{tmp}")
    a(f"v_or_b32 v{dst}, v{dst}, v{tmp}")

import os
EXP = os.environ.get('K1EXP','stag,nopf')
WROW = 576
STB = os.environ.get('K1ST', 'sc1')
def gen_loader(a, hi, diag=False):
    ld = diag and 'ldiag' in EXP
    nW = 4 if hi else 5
    VM = [1, 2, 3, 4, 5]; VX = 6; VT = 8
    t = 10
    a("v_and_b32 v0, 63, v0")
    a(f"s_sub_u32 s{sW}, s{sW}, 4")
    a(f"v_lshrrev_b32 v{t}, 3, v0")
    a(f"s_lshl_b32 s{sB}, s{sMt}, 7")
    a(f"s_lshl_b32 s{sC}, s{sW}, 3")
    a(f"s_add_u32 s{sB}, s{sB}, s{sC}")
    a(f"v_add_u32 v{t}, s{sB}, v{t}")
    a(f"v_bfe_u32 v{t+1}, v{t}, 1, 3")
    a(f"v_mul_u32_u24 v{t}, 1152, v{t}")
    a(f"v_and_b32 v{t+2}, 7, v0")
    a(f"v_xor_b32 v{t+1}, v{t+1}, v{t+2}")
    a(f"v_lshl_add_u32 v{VX}, v{t+1}, 4, v{t}")
    a(f"s_mul_i32 s{sA}, s{sNg}, 144")
    a(f"s_and_b32 s39, s{sA}, 63")
    a(f"s_andn2_b32 s{sA}, s{sA}, 63")
    a(f"s_add_u32 s40, s39, 144")
    for q in range(nW):
        a(f"s_lshl_b32 s{sB}, s{sW}, 6")
        a(f"s_add_u32 s{sB}, s{sB}, {256*q}")
        a(f"v_add_u32 v{t}, s{sB}, v0")
        a(f"v_mul_u32_u24 v{t+1}, 1821, v{t}")
        a(f"v_lshrrev_b32 v{t+1}, 16, v{t+1}")
        a(f"v_mul_u32_u24 v{t+2}, 36, v{t+1}")
        a(f"v_sub_u32 v{t+2}, v{t}, v{t+2}")
        a(f"v_lshrrev_b32 v{t+3}, 2, v{t+1}")
        a(f"v_and_b32 v{t+3}, 2, v{t+3}")
        a(f"v_xor_b32 v{t+2}, v{t+2}, v{t+3}")
        a(f"v_mul_u32_u24 v{t+3}, 43, v{t+2}")
        a(f"v_lshrrev_b32 v{t+3}, 9, v{t+3}")
        a(f"v_mul_u32_u24 v{t+4}, 12, v{t+3}")
        a(f"v_sub_u32 v{t+4}, v{t+2}, v{t+4}")
        a(f"v_lshlrev_b32 v{t+4}, 4, v{t+4}")
        a(f"v_mul_u32_u24 v{t+3}, 1152, v{t+3}")
        a(f"v_mul_u32_u24 v{t+5}, 3456, v{t+1}")
        a(f"v_add3_u32 v{t+5}, v{t+5}, v{t+3}, v{t+4}")
        a(f"v_add_u32 v{t+5}, s{sA}, v{t+5}")
        a(f"v_cmp_le_u32 vcc, s39, v{t+4}")
        a(f"v_cmp_gt_u32 s[42:43], s40, v{t+4}")
        a(f"v_bfrev_b32 v{t+7}, 1")
        a("s_and_b64 vcc, vcc, s[42:43]")
        a("s_nop 1")
        a(f"v_cndmask_b32 v{VM[q]}, v{t+7}, v{t+5}, vcc")
    sM = [30, 31, 32, 33, 34]; sXd = 35
    a(f"s_lshl_b32 s{sB}, s{sW}, 10")
    for q in range(nW): a(f"s_add_u32 s{sM[q]}, s{sB}, {4096*q}")
    a(f"s_add_u32 s{sXd}, s{sB}, {XB}")
    sKW, sKX = 37, 38
    if ld: diag_mark(a, 0)
    a("s_waitcnt lgkmcnt(0)")
    select_ptrs(a)
    STAG = 'stag' in EXP.split(',')
    sCC = 51
    if STAG:
        a(f"s_bfe_u32 s{sA}, s2, 0x30003")
        a(f"s_bfe_u32 s{sB}, s2, 0x20006")
        a(f"s_mul_i32 s{sB}, s{sB}, {os.environ.get('K1STB', '5')}")
        a(f"s_lshr_b32 s{sB}, s{sB}, 1")
        a(f"s_add_u32 s{sCC}, s{sA}, s{sB}")
        a(f"s_cmp_ge_u32 s{sCC}, 9")
        a(f"s_cselect_b32 s{sA}, 9, 0")
        a(f"s_sub_u32 s{sCC}, s{sCC}, s{sA}")
        a(f"s_lshl_b32 s{sCC}, s{sCC}, 1")
    sCX = 52
    if STAG: a(f"s_lshr_b32 s{sCX}, s{sCC}, 1")
    def issue_w(c):
        st = (c % NS) * STG
        if STAG:
            a(f"s_mul_i32 s{sKW}, s{sCC}, {32 * 3456}")
            a(f"s_add_u32 s{sCC}, s{sCC}, 1")
            a(f"s_cmp_eq_u32 s{sCC}, {NCH}")
            a(f"s_cselect_b32 s{sCC}, 0, s{sCC}")
        else:
            a(f"s_mov_b32 s{sKW}, {c * 32 * 3456}")
        for q in range(0 if 'now' in EXP else nW):
            a(f"s_add_u32 m0, s{sM[q]}, {st}")
            a("s_nop 0")
            a.vmem(f"buffer_load_dwordx4 v{VM[q]}, s[{sWq}:{sWq+3}], s{sKW} offen {os.environ.get('K1WB', '')} lds", f"w{c}")
    def issue_x(sl):
        st = (sl % 3) * XSTG
        if STAG:
            a(f"s_lshl_b32 s{sKX}, s{sCX}, 7")
            a(f"s_add_u32 s{sCX}, s{sCX}, 1")
            a(f"s_cmp_eq_u32 s{sCX}, {NCH//2}")
            a(f"s_cselect_b32 s{sCX}, 0, s{sCX}")
        else:
            a(f"s_mov_b32 s{sKX}, {sl * 128}")
        for q in range(4):
            a(f"s_add_u32 m0, s{sXd}, {st + 4096*q}")
            if q: a(f"s_add_u32 s{sKX}, s{sKX}, {32*1152}")
            else: a("s_nop 0")
            a.vmem(f"buffer_load_dwordx4 v{VX}, s[{sX}:{sX+3}], s{sKX} offen {os.environ.get('K1XB', '')} lds", f"x{sl}")
    a.vm_reset()
    PD = int(os.environ.get('K1PD', '3'))
    items = [("x", 0, -1), ("w", 0, -1), ("w", 1, -1), ("x", 1, -1), ("w", 2, -1), ("w", 3, -1), ("x", 2, -1), ("w", 4, -1), ("w", 5, -1)]
    for c in range(6, NCH):
        if c % 2 == 1 and (c - 1) // 2 < NCH // 2: items.append(("x", (c - 1) // 2, c - 5))
        items.append(("w", c, c - 5))
    def emit(it):
        if it[0] == "x":
            if 'nox' not in EXP: issue_x(it[1])
        else: issue_w(it[1])
    pos = 0; nw_ = 0
    while nw_ < PD:
        emit(items[pos]); nw_ += items[pos][0] == "w"; pos += 1
    if ld: diag_mark(a, 1)
    for b in range(NCH):
        tags = [f"w{b}"] + ([f"x{b//2}"] if b % 2 == 0 else [])
        tags = [t_ for t_ in tags if t_ in a.vm]
        if tags:
            last = max(tags, key=lambda t_: max(i for i, v in enumerate(a.vm) if v == t_))
            a.wait_vm(last)
        if ld and b == 0: diag_mark(a, 2)
        a("s_barrier")
        k = 0
        while pos < len(items) and items[pos][2] <= b and k < 2:
            emit(items[pos]); k += items[pos][0] == "w"; pos += 1
    assert pos == len(items)
    if ld:
        a("s_load_dwordx2 s[4:5], s[0:1], 64")
        a("s_waitcnt lgkmcnt(0)")
        diag_end(a, 0, sW, 4, 16, waves=8)
    a("s_endpgm")

def select_ptrs(a):
    a(f"s_cmp_eq_u32 s{sBr}, 0")
    a(f"s_cselect_b32 s{sX}, s4, s8")
    a(f"s_cselect_b32 s{sX+1}, s5, s9")
    a(f"s_cselect_b32 s{sWq}, s6, s10")
    a(f"s_cselect_b32 s{sWq+1}, s7, s11")
    a(f"s_and_b32 s{sX+1}, s{sX+1}, 0xffff")
    a(f"s_and_b32 s{sWq+1}, s{sWq+1}, 0xffff")
    a(f"s_mov_b32 s{sX+2}, {S*D*2}")
    a(f"s_mov_b32 s{sX+3}, 0x00020000")
    a(f"s_mov_b32 s{sWq+2}, {D*3*D*2}")
    a(f"s_mov_b32 s{sWq+3}, 0x00020000")

sP, sPS = 56, 60
VTO, VTD = 238, 239
def gen_touch_setup(a):
    t = T; j = 62
    a(f"s_lshr_b32 s{j}, s2, 3")
    a(f"v_and_b32 v{t}, 15, v0")
    a(f"s_lshl_b32 s{sB}, s{sW}, 4")
    a(f"v_add_u32 v{t}, s{sB}, v{t}")
    a(f"s_lshl_b32 s{sB}, s{j}, 6")
    a(f"s_cmp_ge_u32 s{j}, 16")
    a("s_cbranch_scc1 K1_PF_W")
    a(f"s_and_b32 s{sA}, s2, 1")
    a(f"s_lshl_b32 s{sA}, s{sA}, 10")
    a(f"s_add_u32 s{sA}, s{sA}, s{sB}")
    a(f"v_add_u32 v{t}, s{sA}, v{t}")
    a(f"v_mul_u32_u24 v{t}, 1152, v{t}")
    a(f"s_mov_b32 s{sPS+1}, 128")
    a("s_waitcnt lgkmcnt(0)")
    a(f"s_cmp_eq_u32 s{sBr}, 0")
    a(f"s_cselect_b32 s{sP}, s4, s8")
    a(f"s_cselect_b32 s{sP+1}, s5, s9")
    a(f"s_mov_b32 s{sP+2}, {S*D*2}")
    a("s_branch K1_PF_GO")
    a.label("K1_PF_W")
    a(f"s_sub_u32 s{sB}, s{sB}, 1024")
    a(f"v_add_u32 v{t}, s{sB}, v{t}")
    a(f"v_mul_u32_u24 v{t+1}, 4370, v{t}")
    a(f"v_lshrrev_b32 v{t+1}, 16, v{t+1}")
    a(f"v_mul_u32_u24 v{t+2}, 15, v{t+1}")
    a(f"v_sub_u32 v{t+2}, v{t}, v{t+2}")
    a(f"v_mul_u32_u24 v{t+3}, 52, v{t+2}")
    a(f"v_lshrrev_b32 v{t+3}, 8, v{t+3}")
    a(f"v_mul_u32_u24 v{t+4}, {1152 - 640}, v{t+3}")
    a(f"v_lshl_add_u32 v{t+4}, v{t+2}, 7, v{t+4}")
    a(f"v_mul_u32_u24 v{t+5}, 3456, v{t+1}")
    a(f"s_bfe_u32 s{sA}, s2, 0x10001")
    a(f"s_lshl_b32 s{sA}, s{sA}, 9")
    a(f"v_add3_u32 v{t+5}, v{t+5}, v{t+4}, s{sA}")
    a(f"v_cmp_gt_u32 vcc, 64, v{t+1}")
    a(f"v_bfrev_b32 v{t}, 1")
    a(f"s_mov_b32 s{sPS+1}, {64*3456}")
    a(f"v_cndmask_b32 v{t}, v{t}, v{t+5}, vcc")
    a("s_waitcnt lgkmcnt(0)")
    a(f"s_cmp_eq_u32 s{sBr}, 0")
    a(f"s_cselect_b32 s{sP}, s6, s10")
    a(f"s_cselect_b32 s{sP+1}, s7, s11")
    a(f"s_mov_b32 s{sP+2}, {D*3*D*2}")
    a.label("K1_PF_GO")
    a(f"s_and_b32 s{sP+1}, s{sP+1}, 0xffff")
    a(f"s_mov_b32 s{sP+3}, 0x00020000")
    a(f"v_bfrev_b32 v{t+1}, 1")
    a(f"v_cmp_gt_u32 vcc, 16, v{t+8}")
    a("s_nop 1")
    a(f"v_cndmask_b32 v{VTO}, v{t+1}, v{t}, vcc")
    for sl in range(PF0): touch(a, sl)

PF = 'nopf' not in EXP
PF0 = int(os.environ.get('K1PF0', '5'))
def touch(a, sl):
    if not PF or sl >= 9: return
    a(f"s_mul_i32 s{sPS}, s{sPS+1}, {sl}")
    a(f"buffer_load_dword v{VTD}, v{VTO}, s[{sP}:{sP+3}], s{sPS} offen")

def gen_consumer(a, nw, diag):
    t = T
    L = 217
    a(f"v_and_b32 v{L}, 63, v0")
    a(f"s_and_b32 s{sC}, s{sW}, 1")
    a(f"v_lshrrev_b32 v{t}, 4, v{L}")
    a(f"v_bfe_u32 v{t+1}, v{L}, 2, 2")
    a(f"v_and_b32 v{t+2}, 3, v{L}")
    a(f"v_lshl_add_u32 v{t+3}, v{t}, 3, v{t+1}")
    a(f"v_mul_u32_u24 v{t+3}, {WROW}, v{t+3}")
    a(f"v_and_b32 v{t+5}, 1, v{t}")
    a(f"v_lshlrev_b32 v{t+5}, 5, v{t+5}")
    a(f"s_mul_i32 s{sA}, s{sNg}, 144")
    a(f"s_and_b32 s{sA}, s{sA}, 63")
    for jj, dst in ((0, AW0), (1, AW1)):
        a(f"s_add_u32 s{sB}, s{sA}, {72*nw + 40*jj}")
        a(f"v_lshl_add_u32 v{t+6}, v{t+2}, 3, s{sB}")
        a(f"v_xor_b32 v{t+6}, v{t+6}, v{t+5}")
        a(f"v_add_u32 v{dst}, v{t+6}, v{t+3}")
    a(f"v_and_b32 v{t+7}, 1, v{t+2}")
    a(f"v_mul_u32_u24 v{t+7}, 72, v{t+7}")
    a(f"s_add_u32 s{sB}, s{sA}, 32")
    a(f"v_add_u32 v{t+7}, s{sB}, v{t+7}")
    a(f"v_xor_b32 v{t+7}, v{t+7}, v{t+5}")
    if nw == 0:
        a(f"v_lshrrev_b32 v{t+4}, 1, v{t+2}")
        a(f"v_mul_u32_u24 v{t+4}, 192, v{t+4}")
        a(f"v_add3_u32 v{AR}, v{t+7}, v{t+3}, v{t+4}")
    else:
        a(f"v_add_u32 v{t+7}, 384, v{t+7}")
        a(f"v_add_u32 v{AR}, v{t+7}, v{t+3}")
    a(f"v_and_b32 v{t+6}, 15, v{L}")
    a(f"v_bfe_u32 v{t+7}, v{L}, 1, 3")
    a(f"v_xor_b32 v{t+7}, v{t+7}, v{t}")
    a(f"v_lshlrev_b32 v{t+7}, 4, v{t+7}")
    a(f"v_lshl_add_u32 v{t+7}, v{t+6}, 7, v{t+7}")
    a(f"s_lshl_b32 s{sA}, s{sC}, 13")
    a(f"s_add_u32 s{sA}, s{sA}, {XB}")
    a(f"v_add_u32 v{AX}, s{sA}, v{t+7}")
    a(f"v_xor_b32 v{AX+1}, 64, v{AX}")
    for base in (AW0, AW1, AR):
        a(f"v_add_u32 v{base+1}, {3*STG}, v{base}")
    a(f"v_lshlrev_b32 v{VQ}, 4, v{L}")
    pi16(a, t + 8, L, t + 9)
    a(f"v_lshlrev_b32 v{VK}, 4, v{t+8}")
    a(f"v_and_b32 v{t+9}, 1, v{t}")
    a(f"v_lshrrev_b32 v{t+10}, 1, v{t}")
    a(f"v_lshl_add_u32 v{t+9}, v{t+9}, 1, v{t+10}")
    a(f"v_mul_u32_u24 v{t+9}, {VT_CHUNK}, v{t+9}")
    a(f"v_lshl_add_u32 v{VV}, v{t+6}, 4, v{t+9}")
    if nw == 0:
        a(f"v_and_b32 v{t+10}, 15, v{t+8}")
        a(f"v_cmp_gt_u32 vcc, 32, v{L}")
        a(f"v_cndmask_b32 v{t+10}, v{t+10}, v{t+6}, vcc")
        a(f"v_and_b32 v{t+11}, 1, v{t}")
        a(f"v_lshlrev_b32 v{t+11}, 14, v{t+11}")
        a(f"v_lshl_add_u32 v{t+11}, v{t+10}, 2, v{t+11}")
        a(f"v_add_u32 v{t+10}, {KR_OFF - QR_OFF}, v{t+11}")
        a(f"v_cndmask_b32 v{VR}, v{t+10}, v{t+11}, vcc")
        a(f"s_mov_b32 s{sA}, {f2u(QSCALE):#x}")
        a(f"v_mov_b32 v{t+10}, s{sA}")
        a(f"v_cndmask_b32 v{VSC}, 1.0, v{t+10}, vcc")
    else:
        a(f"v_lshrrev_b32 v{t+10}, 1, v{t+6}")
        a(f"v_and_b32 v{t+11}, 1, v{t+6}")
        a(f"v_and_b32 v{t+12}, 2, v{t+6}")
        a(f"v_cmp_eq_u32 vcc, 0, v{t+12}")
        a(f"v_add_u32 v{t+12}, 16, v{t+11}")
        a("s_nop 0")
        a(f"v_cndmask_b32 v{t+11}, v{t+11}, v{t+12}, vcc")
        a(f"v_subrev_u32 v{t+12}, 8, v{t+6}")
        a(f"v_cmp_gt_u32 vcc, 8, v{t+6}")
        a("s_nop 1")
        a(f"v_cndmask_b32 v{t+10}, v{t+12}, v{t+10}, vcc")
        a(f"v_cndmask_b32 v{t+11}, 18, v{t+11}, vcc")
        a(f"s_mov_b32 s{sA}, {VT_HEAD}")
        a(f"v_mul_lo_u32 v{t+10}, v{t+10}, s{sA}")
        a(f"v_lshl_add_u32 v{t+10}, v{t+11}, 4, v{t+10}")
        a(f"v_add_u32 v{t+10}, v{t+10}, v{t+9}")
        a(f"v_bfrev_b32 v{t+11}, 1")
        a(f"v_cmp_gt_u32 s[40:41], 12, v{t+6}")
        a(f"v_cndmask_b32 v{VR}, v{t+11}, v{t+10}, s[40:41]")
        a("s_mov_b64 s[42:43], vcc")
    sQ, sK, sV, sR0, sR1 = 44, 45, 46, 47, 48
    a(f"s_lshl_b32 s{sA}, s{sNg}, 2")
    a(f"s_add_u32 s{sA}, s{sA}, {2*nw}")
    a(f"s_lshl_b32 s{sB}, s{sMt}, 1")
    a(f"s_add_u32 s{sB}, s{sB}, s{sC}")
    a(f"s_lshl_b32 s{sQ}, s{sA}, 16")
    a(f"s_lshl_b32 s{sK}, s{sB}, 11")
    a(f"s_add_u32 s{sQ}, s{sQ}, s{sK}")
    a(f"s_lshl_b32 s{sK}, s{sBr}, 21")
    a(f"s_add_u32 s{sQ}, s{sQ}, s{sK}")
    a(f"s_add_u32 s{sK}, s{sQ}, {KM_OFF}")
    a(f"s_mul_i32 s{sV}, s{sA}, {VT_HEAD}")
    a(f"s_mul_i32 s{sR0}, s{sB}, {8*VT_CHUNK}")
    a(f"s_add_u32 s{sV}, s{sV}, s{sR0}")
    a(f"s_mul_i32 s{sR0}, s{sBr}, {VT_BR}")
    a(f"s_add_u32 s{sV}, s{sV}, s{sR0}")
    a(f"s_add_u32 s{sV}, s{sV}, {VT_OFF}")
    if nw == 0:
        a(f"s_lshl_b32 s{sR0}, s{sA}, 13")
        a(f"s_lshl_b32 s{sR1}, s{sB}, 8")
        a(f"s_add_u32 s{sR0}, s{sR0}, s{sR1}")
        a(f"s_lshl_b32 s{sR1}, s{sBr}, 18")
        a(f"s_add_u32 s{sR0}, s{sR0}, s{sR1}")
        a(f"s_add_u32 s{sR0}, s{sR0}, {QR_OFF}")
        a(f"s_add_u32 s{sR1}, s{sR0}, {R_HEAD}")
    else:
        a(f"s_sub_u32 s{sR0}, s{sV}, {2*VT_HEAD}")
    sQ1, sK1, sV1 = 49, 50, 51
    a(f"s_add_u32 s{sQ1}, s{sQ}, {M_HEAD}")
    a(f"s_add_u32 s{sK1}, s{sK}, {M_HEAD}")
    a(f"s_add_u32 s{sV1}, s{sV}, {VT_HEAD}")
    a(f"s_mov_b32 s52, {f2u(QSCALE):#x}")
    a(f"s_mov_b32 s53, {f2u(QSCALE):#x}")
    a("s_load_dwordx2 s[20:21], s[0:1], 64")
    def reads(c):
        buf = c % 2; st = c % NS
        sset, so = st // 3, (st % 3) * STG
        out = []
        xs = [f"ds_read_b128 {vr(FX[buf]+4*tt,4)}, v{AX + c % 2} offset:{((c // 2) % 3) * XSTG + tt*2048}" for tt in range(4)]
        ws = []
        for n in range(7):
            for rd in range(2):
                d = FW[buf] + 4*n + 2*rd
                if n < 6:
                    ad = (AW0 if n % 2 == 0 else AW1) + sset
                    ws.append(f"ds_read_b64_tr_b16 {vr(d,2)}, v{ad} offset:{so + (n//2)*192 + rd*4*WROW}")
                else:
                    ws.append(f"ds_read_b64_tr_b16 {vr(d,2)}, v{AR+sset} offset:{so + rd*4*WROW}")
        return xs[:1] + ws[:2] + xs[1:] + ws[2:]
    def mfmas(c):
        buf = c % 2
        out = []
        for n in range(7):
            for tt in range(4):
                w = vr(FW[buf] + 4*n, 4); x = vr(FX[buf] + 4*tt, 4)
                dt = (n < 4) or (n == 6 and nw == 0)
                A, B = (w, x) if dt else (x, w)
                cc = "0" if c == 0 else vr(acc(n, tt), 4)
                out.append(f"v_mfma_f32_16x16x32_bf16 {vr(acc(n,tt),4)}, {A}, {B}, {cc}")
        return out
    a("s_barrier")
    if diag: diag_mark(a, 0)
    for r in reads(0): a(r)
    for c in range(NCH):
        m = mfmas(c)
        a("s_waitcnt lgkmcnt(0)")
        if c + 1 < NCH:
            rd = reads(c + 1)
            for i in range(2): a(m[i])
            a("s_barrier")
            if c % 2 == 1: touch(a, PF0 + c // 2)
            if diag and 'tl' in EXP.split(',') and c % 2 == 0: a(f"s_memtime s[{64 + c}:{65 + c}]")
            k = 0
            for i in range(2, 28):
                if 'nomfma' not in EXP: a(m[i])
                if k < len(rd) and 'noread' not in EXP: a(rd[k]); k += 1
        else:
            for x in m: a(x)
    if diag: diag_mark(a, 1)
    a("s_waitcnt vmcnt(0)")
    a("s_and_b32 s21, s21, 0xffff")
    a(f"s_mov_b32 s22, {WS_USED}")
    a("s_mov_b32 s23, 0x00020000")
    a.nop(6)
    tb = [T, T + 4, T + 8, T + 12]
    cnt = [0]
    def pack_pair(n, tt, scale):
        A = acc(n, tt); B = acc(n, tt + 1)
        d = tb[cnt[0] % 4]; cnt[0] += 1
        if scale:
            for r in (A, A + 2, B, B + 2):
                a(f"v_pk_mul_f32 {vr(r,2)}, {vr(r,2)}, s[52:53]")
        a(f"v_cvt_pk_bf16_f32 v{d}, v{A}, v{A+1}")
        a(f"v_cvt_pk_bf16_f32 v{d+1}, v{A+2}, v{A+3}")
        a(f"v_cvt_pk_bf16_f32 v{d+2}, v{B}, v{B+1}")
        a(f"v_cvt_pk_bf16_f32 v{d+3}, v{B+2}, v{B+3}")
        return d
    def swap(d):
        a.nop(2)
        a(f"v_permlane16_swap_b32 v{d}, v{d+2}")
        a(f"v_permlane16_swap_b32 v{d+1}, v{d+3}")
    for n in range(6):
        tau, jj = n // 2, n % 2
        for tt in (0, 2):
            d = pack_pair(n, tt, tau == 0)
            swap(d)
            if tau < 2:
                base = [[sQ, sQ1], [sK, sK1]][tau][jj]
                a(f"buffer_store_dwordx4 {vr(d,4)}, v{[VQ, VK][tau]}, s[20:23], s{base} offen offset:{(tt//2)*1024} {STB}")
            else:
                a(f"buffer_store_dwordx4 {vr(d,4)}, v{VV}, s[20:23], s{[sV, sV1][jj]} offen offset:{tt*2*VT_CHUNK + 32*jj} {STB}")
    if nw == 0:
        for tt in range(4):
            A = acc(6, tt)
            d = tb[cnt[0] % 4]; cnt[0] += 1
            for r in range(4):
                a(f"v_mul_f32 v{A+r}, v{A+r}, v{VSC}")
            a(f"v_cvt_pk_bf16_f32 v{d}, v{A}, v{A+1}")
            a(f"v_cvt_pk_bf16_f32 v{d+1}, v{A+2}, v{A+3}")
            a(f"buffer_store_dword v{d}, v{VR}, s[20:23], s{sR0} offen offset:{tt*64} {STB}")
            a(f"buffer_store_dword v{d+1}, v{VR}, s[20:23], s{sR1} offen offset:{tt*64} {STB}")
    else:
        a(f"v_mov_b32 v{FX[0]}, 0x3f803f80")
        for tt in (0, 2):
            d = pack_pair(6, tt, False)
            for r in range(4):
                a(f"v_cndmask_b32 v{d+r}, v{FX[0]}, v{d+r}, s[42:43]")
            swap(d)
            a(f"buffer_store_dwordx4 {vr(d,4)}, v{VR}, s[20:23], s{sR0} offen offset:{tt*2*VT_CHUNK} {STB}")
    if diag and 'ldiag' not in EXP:
        diag_mark(a, 2)
        a("s_waitcnt vmcnt(0)")
        a("s_mov_b32 s4, s20"); a("s_mov_b32 s5, s21")
        if 'tl' in EXP.split(','):
            a("s_waitcnt lgkmcnt(0)")
            a(f"s_mul_i32 s96, s2, 8")
            a(f"s_add_u32 s96, s96, s{sW}")
            a("s_lshl_b32 s96, s96, 6")
            a(f"s_add_u32 s96, s96, {DIAG_OFF + 3 * 0x100000}")
            a("s_add_u32 s98, s4, s96")
            a("s_addc_u32 s99, s5, 0")
            for i in range(9): a(f"s_sub_u32 s{64+2*i}, s{64+2*i}, s90")
            for i in range(9): a(f"v_mov_b32 v{16+i}, s{64+2*i}")
            a("v_mov_b32 v32, 0")
            for q in range(3): a(f"global_store_dwordx4 v32, v[{16+4*q}:{19+4*q}], s[98:99] offset:{16*q}")
        diag_end(a, 0, sW, 4, 16, waves=8)
    a("s_endpgm")

import struct
def f2u(x): return struct.unpack("<I", struct.pack("<f", x))[0]

def gen_k1(name="qkv_kernel", diag=False):
    a = Asm()
    a(f".p2align 8\n.type {name},@function")
    a.label(name)
    a("s_cmp_ge_u32 s2, 256")
    a("s_cbranch_scc1 K1_END")
    if diag: diag_start(a)
    a("s_load_dwordx4 s[4:7], s[0:1], 0")
    a("s_load_dwordx4 s[8:11], s[0:1], 24")
    a("v_lshrrev_b32 v1, 6, v0")
    a(f"s_bfe_u32 s{sBr}, s2, 0x10002")
    a(f"v_readfirstlane_b32 s{sW}, v1")
    a(f"s_and_b32 s{sA}, s2, 1")
    a(f"s_bfe_u32 s{sB}, s2, 0x10001")
    a(f"s_bfe_u32 s{sMt}, s2, 0x30003")
    a(f"s_lshl_b32 s{sA}, s{sA}, 3")
    a(f"s_or_b32 s{sMt}, s{sMt}, s{sA}")
    a(f"s_bfe_u32 s{sNg}, s2, 0x20006")
    a(f"s_lshl_b32 s{sB}, s{sB}, 2")
    a(f"s_or_b32 s{sNg}, s{sNg}, s{sB}")
    a(f"s_cmp_lt_u32 s{sW}, 4")
    a("s_cbranch_scc1 K1_CONS")
    a(f"s_cmp_ge_u32 s{sW}, 6")
    a("s_cbranch_scc1 K1_LOADER1")
    gen_loader(a, 0, diag)
    a.label("K1_LOADER1")
    gen_loader(a, 1, diag)
    a.label("K1_CONS")
    if PF:
        a(f"v_and_b32 v{T+8}, 63, v0")
        gen_touch_setup(a)
    a(f"s_cmp_ge_u32 s{sW}, 2")
    a("s_cbranch_scc1 K1_CONS1")
    gen_consumer(a, 0, diag)
    a.label("K1_CONS1")
    gen_consumer(a, 1, diag)
    a.label("K1_END")
    a("s_endpgm")
    return a.text()

K1_DESC = """
.amdhsa_kernel {name}
  .amdhsa_next_free_vgpr 240
  .amdhsa_next_free_sgpr 102
  .amdhsa_accum_offset 240
  .amdhsa_group_segment_fixed_size 0
  .amdhsa_kernarg_size 72
  .amdhsa_user_sgpr_count 2
  .amdhsa_user_sgpr_kernarg_segment_ptr 1
  .amdhsa_system_sgpr_workgroup_id_x 1
  .amdhsa_float_denorm_mode_32 3
.end_amdhsa_kernel
"""
K1_LAUNCH = f"grid=(256,1,1) block=(512,1,1) lds={XB + 3*XSTG}"
```

```python
from asm import *
from layout import *

import os
STB = os.environ.get('K2ST', 'sc1')
NEG = 0xF149F2CA
vKm, vKr, vV, vQr, vO, vO3, vLW, vLR = 1, 2, 3, 4, 5, 6, 7, 8
T0 = 9
O_ = [16, 32, 48, 64]
S_ = [80, 96]
P_ = 112
QA = [120, 126, 132, 138]
ST = [144, 158, 172]
QB = 186
KB = [192 + 6 * i for i in range(9)]
VB = [16 + 8 * i for i in range(8)] + [120]
OB = 128
R_ = 144
TA, TB = 156, 168
MD, MF = 144, 160
sSRD = 8
sHead, sG, sW, sPass = 12, 13, 14, 15
sKm = [16, 17, 18, 19]; sKr = 20; sV = [21, 22, 23, 24, 25, 26]
sQm, sQr, sOA, sOB = 27, 28, 29, 30
sT8, sKmB, sKrB, sVB, sQmB, sQrB = 31, 32, 33, 34, 35, 36
sA, sB = 37, 38
sLo = 72
sFail = 39
sVt0, sVG, sVL = 74, 75, 76
VBL = 49280
sCmp = 40

def mfma16(a, d, x, y, c):
    a(f"v_mfma_f32_32x32x16_bf16 {vr(d,16)}, {vr(x,4)}, {vr(y,4)}, {c if isinstance(c,str) else vr(c,16)}")
def mfma8(a, d, x, y, c):
    a(f"v_mfma_f32_32x32x8_bf16 {vr(d,16)}, {vr(x,2)}, {vr(y,2)}, {vr(c,16)}")

def load_k(a, kt, tag):
    st = ST[kt % 3]
    a.vmem(f"buffer_load_dwordx4 {vr(st,4)}, v{vKm}, s[8:11], s{sKm[kt//4]} offen offset:{(kt%4)*1024}", tag)
    a.vmem(f"buffer_load_dword v{st+4}, v{vKr}, s[8:11], s{sKr} offen offset:{kt*128}", tag)
def load_v(a, kt, tag):
    st = ST[kt % 3]
    o = (kt % 3) * 1216
    a.vmem(f"buffer_load_dwordx4 {vr(st+6,4)}, v{vV}, s[8:11], s{sV[kt//3]} offen offset:{o}", tag)
    a.vmem(f"buffer_load_dwordx4 {vr(st+10,4)}, v{vV}, s[8:11], s{sV[kt//3]} offen offset:{o+608}", tag)

def exps(a, s, lo):
    for r in range(lo, lo + 4):
        a(f"v_exp_f32 v{s+r}, v{s+r}")
    a(f"v_cvt_pk_bf16_f32 v{P_+lo//2}, v{s+lo}, v{s+lo+1}")
    a(f"v_cvt_pk_bf16_f32 v{P_+lo//2+1}, v{s+lo+2}, v{s+lo+3}")

def b_tile_index(a, i):
    a(f"s_add_i32 s{sA}, s{sT8}, {i}")
    a(f"s_max_i32 s{sA}, s{sA}, 0")

def normalize_store(a, R, sO, tag, check):
    a(f"v_mov_b32 v{T0}, v{R+10}")
    a(f"v_mov_b32 v{T0+1}, v{R+10}")
    a.nop(2)
    a(f"v_permlane32_swap_b32 v{T0}, v{T0+1}")
    if check:
        a(f"v_add_f32 v{T0+2}, |v{R}|, |v{R+1}|")
        for r in range(2, 10):
            a(f"v_add_f32 v{T0+2}, v{T0+2}, |v{R+r}|")
        a(f"s_mov_b32 s{sA}, 0x1f800000")
        a(f"s_mov_b32 s{sB}, 0x5f800000")
        a(f"v_cmp_le_f32 s[40:41], s{sA}, v{T0}")
        a(f"v_cmp_ge_f32 s[42:43], s{sB}, v{T0}")
        a(f"s_mov_b32 s{sA}, 0x7e800000")
        a(f"v_cmp_gt_f32 s[44:45], s{sA}, v{T0+2}")
    a(f"v_rcp_f32 v{T0}, v{T0}")
    if check:
        a("s_nop 3")
        a("s_and_b64 s[40:41], s[40:41], s[42:43]")
        a("s_and_b64 s[40:41], s[40:41], s[44:45]")
        a("s_cmp_eq_u64 s[40:41], -1")
        a(f"s_cselect_b32 s{sFail}, 0, 1")
    else:
        a.nop(1)
    for r in range(10):
        a(f"v_mul_f32 v{R+r}, v{R+r}, v{T0}")
    a(f"v_cvt_pk_bf16_f32 v{T0+1}, v{R+8}, v{R+9}")
    a(f"v_cvt_pk_bf16_f32 v{T0+3}, v{R}, v{R+1}")
    a(f"v_cvt_pk_bf16_f32 v{T0+4}, v{R+2}, v{R+3}")
    a(f"v_cvt_pk_bf16_f32 v{T0+5}, v{R+4}, v{R+5}")
    a(f"v_cvt_pk_bf16_f32 v{T0+6}, v{R+6}, v{R+7}")
    a.vmem(f"buffer_store_dword v{T0+1}, v{vO3}, s[8:11], s{sO} offen {STB}", tag)
    a.vmem(f"buffer_store_dwordx4 {vr(T0+3,4)}, v{vO}, s[8:11], s{sO} offen {STB}", tag)

def split_neg_max(a, vm, dst, tmp):
    a(f"v_sub_f32 v{tmp}, 0, v{vm}")
    a(f"v_and_b32 v{tmp+1}, 0xffff0000, v{tmp}")
    a(f"v_sub_f32 v{tmp}, v{tmp}, v{tmp+1}")
    a(f"v_cvt_pk_bf16_f32 v{tmp}, v{tmp+1}, v{tmp}")
    a(f"v_cndmask_b32 v{dst}, v{dst}, v{tmp}, s[{sLo}:{sLo+1}]")

LADDER = {int(x.split(':')[0]): int(x.split(':')[1]) for x in os.environ.get('K2LAD', '0:3,30:2,50:1,60:0').split(',') if x}
TAILP = os.environ.get('K2TAILP', '')
PKV, PKR, PKD = 246, 234, 242
PKS, PKO = 48, 52
def pack_setup(a):
    u, q, nt, c, ng, x = 62, 63, 64, 65, 66, 67
    a("s_load_dwordx2 s[48:49], s[0:1], 16")
    a("s_load_dwordx2 s[50:51], s[0:1], 40")
    a(f"s_lshl_b32 s{u}, s2, 2")
    a(f"s_add_u32 s{u}, s{u}, s{sW}")
    a(f"s_mul_i32 s{q}, s{u}, 52429")
    a(f"s_lshr_b32 s{q}, s{q}, 18")
    a(f"s_mul_i32 s{nt}, s{q}, 5")
    a(f"s_sub_u32 s{nt}, s{u}, s{nt}")
    a(f"s_mul_i32 s{ng}, s{q}, 3641")
    a(f"s_lshr_b32 s{ng}, s{ng}, 16")
    a(f"s_mul_i32 s{c}, s{ng}, 18")
    a(f"s_sub_u32 s{c}, s{q}, s{c}")
    a(f"s_lshl_b32 s{PKO+8}, s{u}, 10")
    a(f"s_add_u32 s{PKO+8}, s{PKO+8}, {WP_OFF}")
    t = T0
    a(f"v_and_b32 v{t}, 15, v0")
    a(f"v_lshrrev_b32 v{t+1}, 4, v0")
    a(f"s_lshl_b32 s{x}, s{nt}, 4")
    a(f"v_add_u32 v{t}, s{x}, v{t}")
    a(f"v_cmp_gt_u32 vcc, 72, v{t}")
    a(f"s_and_b32 s{x}, s{ng}, 7")
    a(f"s_mul_i32 s{x}, s{x}, 144")
    a(f"v_lshl_add_u32 v{t}, v{t}, 1, s{x}")
    a(f"v_lshrrev_b32 v{t+2}, 1, v{t+1}")
    a(f"v_mul_u32_u24 v{t+2}, 18, v{t+2}")
    a(f"v_and_b32 v{t+3}, 1, v{t+1}")
    a(f"v_lshl_add_u32 v{t+2}, v{t+3}, 2, v{t+2}")
    a(f"v_mul_u32_u24 v{t+3}, 72, v{t+1}")
    a(f"s_cmp_lt_u32 s{c}, 16")
    a(f"s_cselect_b64 s[68:69], -1, 0")
    a(f"v_cndmask_b32 v{t+2}, v{t+3}, v{t+2}, s[68:69]")
    a(f"s_mul_i32 s{x}, s{c}, 36")
    a(f"s_sub_u32 s{q}, s{c}, 16")
    a(f"s_mul_i32 s{q}, s{q}, 288")
    a(f"s_add_u32 s{q}, s{q}, 16")
    a(f"s_cmp_lt_u32 s{c}, 16")
    a(f"s_cselect_b32 s{x}, s{x}, s{q}")
    a(f"v_add_u32 v{t+2}, s{x}, v{t+2}")
    a(f"v_mul_u32_u24 v{t+2}, 1152, v{t+2}")
    a(f"v_add_u32 v{t}, v{t}, v{t+2}")
    a(f"v_bfrev_b32 v{t+1}, 1")
    a(f"s_cmp_lt_u32 s{u}, {WP_UNITS}")
    a(f"s_cselect_b64 s[70:71], -1, 0")
    a(f"s_and_b64 vcc, vcc, s[70:71]")
    a(f"v_lshlrev_b32 v{t+2}, 4, v0")
    a(f"v_cndmask_b32 v{PKV}, v{t+1}, v{t}, vcc")
    a(f"v_cndmask_b32 v{PKV+1}, v{t+1}, v{t+2}, s[70:71]")
    for j in range(8):
        m = ((j & 3) + 8 * (j >> 2)) * 1152
        r = ((j >> 1) * 18 + (j & 1)) * 1152
        a(f"s_mov_b32 s{x}, {r}")
        a(f"s_cmp_lt_u32 s{c}, 16")
        a(f"s_cselect_b32 s{PKO+j}, {m}, s{x}")
    a("s_waitcnt lgkmcnt(0)")
    a(f"s_cmp_ge_u32 s{ng}, 8")
    a(f"s_cselect_b32 s{PKS}, s50, s48")
    a(f"s_cselect_b32 s{PKS+1}, s51, s49")
    a(f"s_and_b32 s{PKS+1}, s{PKS+1}, 0xffff")
    a(f"s_mov_b32 s{PKS+2}, {D*D*2}")
    a(f"s_mov_b32 s{PKS+3}, 0x00020000")

def gen_k2(name="attn_kernel", diag=False):
    a = Asm()
    a(f".p2align 8\n.type {name},@function")
    a.label(name)
    a("s_cmp_ge_u32 s2, 512")
    a("s_cbranch_scc1 K2_END")
    if diag: diag_start(a)
    a("s_load_dwordx2 s[4:5], s[0:1], 64")
    a("v_lshrrev_b32 v9, 6, v0")
    a("v_and_b32 v0, 63, v0")
    a(f"v_readfirstlane_b32 s{sW}, v9")
    a("s_and_b32 s3, s2, 7")
    a("s_lshl_b32 s3, s3, 2")
    a(f"s_bfe_u32 s{sHead}, s2, 0x20003")
    a(f"s_or_b32 s{sHead}, s{sHead}, s3")
    a(f"s_lshr_b32 s{sG}, s2, 5")
    a(f"s_mov_b32 s{sPass}, 0")
    a(f"s_mov_b32 s{sLo}, -1")
    a(f"s_mov_b32 s{sLo+1}, 0")
    a(f"v_lshlrev_b32 v{vKm}, 4, v0")
    a(f"v_and_b32 v9, 31, v0")
    a(f"v_lshlrev_b32 v{vKr}, 2, v9")
    a(f"v_lshrrev_b32 v10, 5, v0")
    a(f"v_bfrev_b32 v11, 1")
    a(f"v_mul_u32_u24 v12, 304, v10")
    a(f"v_lshl_add_u32 v12, v9, 4, v12")
    a(f"v_cmp_gt_u32 vcc, 19, v9")
    a(f"v_cmp_gt_u32 s[40:41], 32, v0")
    a(f"v_lshrrev_b32 v13, 4, v9")
    a(f"v_mul_u32_u24 v13, {O_BLK}, v13")
    a(f"v_and_b32 v14, 15, v9")
    a(f"v_lshl_add_u32 v13, v14, 4, v13")
    a(f"v_cndmask_b32 v{vV}, v11, v12, vcc")
    a(f"v_cndmask_b32 v{vQr}, v11, v{vKr}, s[40:41]")
    a(f"v_lshl_add_u32 v{vO}, v10, 8, v13")
    a(f"s_lshr_b32 s{sA}, s{sHead}, 2")
    a(f"s_lshl_b32 s{sA}, s{sA}, 8")
    a(f"s_and_b32 s{sB}, s{sHead}, 3")
    a(f"s_lshl_b32 s{sB}, s{sB}, 2")
    a(f"s_add_u32 s{sA}, s{sA}, s{sB}")
    a(f"s_lshl_b32 s{sB}, s{sHead}, 9")
    a(f"s_sub_u32 s{sA}, s{sA}, s{sB}")
    a(f"s_add_u32 s{sA}, s{sA}, {16*1024}")
    a(f"v_add_u32 v13, s{sA}, v13")
    a(f"v_cndmask_b32 v{vO3}, v11, v13, s[40:41]")
    a(f"s_lshl_b32 s{sA}, s{sHead}, 16")
    a(f"s_lshl_b32 s{sB}, s{sW}, 14")
    a(f"s_add_u32 s{sKm[0]}, s{sA}, s{sB}")
    a(f"s_add_u32 s{sKm[0]}, s{sKm[0]}, {KM_OFF}")
    for j in range(1, 4):
        a(f"s_add_u32 s{sKm[j]}, s{sKm[0]}, {4096*j}")
    a(f"s_add_u32 s{sKmB}, s{sA}, {KM_OFF + M_BR}")
    a(f"s_lshl_b32 s{sB}, s{sG}, 12")
    a(f"s_add_u32 s{sQm}, s{sA}, s{sB}")
    a(f"s_lshl_b32 s{sB}, s{sW}, 10")
    a(f"s_add_u32 s{sQmB}, s{sQm}, s{sB}")
    a(f"s_add_u32 s{sQmB}, s{sQmB}, {QM_OFF + M_BR}")
    a(f"s_lshl_b32 s{sA}, s{sHead}, 13")
    a(f"s_lshl_b32 s{sB}, s{sW}, 11")
    a(f"s_add_u32 s{sKr}, s{sA}, s{sB}")
    a(f"s_add_u32 s{sKr}, s{sKr}, {KR_OFF}")
    a(f"s_add_u32 s{sKrB}, s{sA}, {KR_OFF + R_BR}")
    a(f"s_lshl_b32 s{sB}, s{sG}, 9")
    a(f"s_add_u32 s{sQr}, s{sA}, s{sB}")
    a(f"s_add_u32 s{sQr}, s{sQr}, {QR_OFF}")
    a(f"s_lshl_b32 s{sB}, s{sW}, 7")
    a(f"s_add_u32 s{sQrB}, s{sQr}, s{sB}")
    a(f"s_add_u32 s{sQrB}, s{sQrB}, {R_BR}")
    a(f"s_mul_i32 s{sA}, s{sHead}, {VT_HEAD}")
    a(f"s_add_u32 s{sVB}, s{sA}, {VT_OFF + VT_BR}")
    a(f"s_mul_i32 s{sB}, s{sW}, {16*1216}")
    a(f"s_add_u32 s{sV[0]}, s{sA}, s{sB}")
    a(f"s_add_u32 s{sV[0]}, s{sV[0]}, {VT_OFF}")
    for j in range(1, 6):
        a(f"s_add_u32 s{sV[j]}, s{sV[0]}, {3648*j}")
    a(f"s_lshl_b32 s{sA}, s{sG}, 2")
    a(f"s_add_u32 s{sA}, s{sA}, s{sW}")
    a(f"s_sub_i32 s{sT8}, s{sA}, 8")
    a(f"s_mul_i32 s{sA}, s{sA}, {2*O_BLK}")
    a(f"s_lshl_b32 s{sB}, s{sHead}, 9")
    a(f"s_add_u32 s{sOA}, s{sA}, s{sB}")
    a(f"s_add_u32 s{sOA}, s{sOA}, {O_OFF}")
    a(f"s_add_u32 s{sOB}, s{sOA}, {O_BR}")
    a(f"s_lshl_b32 s{sVt0}, s{sG}, 2")
    a(f"s_sub_i32 s{sVt0}, s{sVt0}, 8")
    a(f"s_max_i32 s{sVt0}, s{sVt0}, 0")
    a(f"s_mul_i32 s{sVG}, s{sVt0}, 1216")
    a(f"s_add_u32 s{sVG}, s{sVG}, s{sVB}")
    a(f"s_lshl_b32 s{sVL}, s{sW}, 10")
    a(f"s_add_u32 s{sVG}, s{sVG}, s{sVL}")
    a(f"s_add_u32 s{sVL}, s{sVL}, {VBL}")
    a(f"s_mul_i32 s{sA}, s{sW}, 3072")
    a(f"s_mul_i32 s{sB}, s{sW}, 12288")
    a(f"v_add_u32 v{vLW}, s{sA}, v{vKm}")
    a(f"v_add_u32 v{vLR}, s{sB}, v{vKm}")
    for st in ST:
        a(f"v_mov_b32 v{st+5}, 0x3f803f80")
    for q in QA:
        a(f"v_mov_b32 v{q+5}, 0")
    a("s_waitcnt lgkmcnt(0)")
    a("s_mov_b32 s8, s4")
    a("s_and_b32 s9, s5, 0xffff")
    a(f"s_mov_b32 s10, {WS_USED}")
    a("s_mov_b32 s11, 0x00020000")
    a.label("K2_A_START")
    def load_q(i):
        a.vmem(f"buffer_load_dwordx4 {vr(QA[i],4)}, v{vKm}, s[8:11], s{sQm} offen offset:{i*1024}", f"QA{i}")
        a.vmem(f"buffer_load_dword v{QA[i]+4}, v{vQr}, s[8:11], s{sQr} offen offset:{i*128}", f"QA{i}")
    load_k(a, 0, "K0"); load_q(0); load_q(1); load_v(a, 0, "V0"); load_q(2); load_q(3)
    pack_setup(a)
    a.wait_vm("QA0")
    if diag: diag_mark(a, 0)
    mfma16(a, S_[0], ST[0], QA[0], "0")
    mfma8(a, S_[0], ST[0] + 4, QA[0] + 4, S_[0])
    a.nop(12)
    NT = 64
    for t in range(NT):
        kt, i = divmod(t, 4)
        s = S_[t % 2]; sn = S_[(t + 1) % 2]
        kn, in_ = divmod(t + 1, 4)
        if t in LADDER: a(f"s_setprio {LADDER[t]}")
        if t == 0: load_k(a, 1, "K1")
        if t == 1: load_v(a, 1, "V1")
        if t == 2: load_k(a, 2, "K2")
        if t == 3: load_v(a, 2, "V2")
        if t == 4:
            for j in range(8):
                a.vmem(f"buffer_load_ushort v{PKR+j}, v{PKV}, s[{PKS}:{PKS+3}], s{PKO+j} offen", "PK")
        if t == 17:
            a.wait_vm("PK")
            for j in range(4):
                a(f"v_lshl_or_b32 v{PKD+j}, v{PKR+2*j+1}, 16, v{PKR+2*j}")
            a.vmem(f"buffer_store_dwordx4 {vr(PKD,4)}, v{PKV+1}, s[8:11], s{PKO+8} offen {STB}", "PKS")
        if i == 3 and kt + 3 < 16:
            load_k(a, kt + 3, f"K{kt+3}")
        if i == 1 and kt >= 1 and kt + 2 < 16:
            load_v(a, kt + 2, f"V{kt+2}")
        if i == 2 and 4 <= kt <= 12:
            j = kt - 4
            b_tile_index(a, j)
            a(f"s_lshl_b32 s{sB}, s{sA}, 10")
            a(f"s_add_u32 s{sB}, s{sB}, s{sKmB}")
            a.vmem(f"buffer_load_dwordx4 {vr(KB[j],4)}, v{vKm}, s[8:11], s{sB} offen", "KB")
            a(f"s_lshl_b32 s{sB}, s{sA}, 7")
            a(f"s_add_u32 s{sB}, s{sB}, s{sKrB}")
            a.vmem(f"buffer_load_dword v{KB[j]+4}, v{vKr}, s[8:11], s{sB} offen", "KB")
        if i == 2 and kt == 13:
            a.vmem(f"buffer_load_dwordx4 {vr(QB,4)}, v{vKm}, s[8:11], s{sQmB} offen", "KB")
            a.vmem(f"buffer_load_dword v{QB+4}, v{vQr}, s[8:11], s{sQrB} offen", "KB")
        if t == 33:
            for q in range(4):
                a(f"s_add_u32 m0, s{sVL}, {4096*q}")
                a(f"s_add_u32 s{sA}, s{sVG}, {4096*q}")
                a.vmem(f"buffer_load_dwordx4 v{vKm}, s[8:11], s{sA} offen lds", "VBL")
        if t + 1 < NT:
            if in_ == 0:
                a.wait_vm(f"K{kn}")
            if t < 3: a.wait_vm(f"QA{t+1}")
            mfma16(a, sn, ST[kn % 3], QA[in_], "0")
        exps(a, s, 0)
        if t + 1 < NT:
            mfma8(a, sn, ST[kn % 3] + 4, QA[in_] + 4, sn)
        exps(a, s, 4)
        if t > 0:
            kp, ip = divmod(t - 1, 4)
            mfma16(a, O_[ip], ST[kp % 3] + 10, P_ + 4, O_[ip])
        exps(a, s, 8)
        if i == 0:
            a.wait_vm(f"V{kt}")
        mfma16(a, O_[i], ST[kt % 3] + 6, P_, "0" if kt == 0 else O_[i])
        exps(a, s, 12)
    if TAILP != '': a(f"s_setprio {TAILP}")
    if diag: diag_mark(a, 1)
    a.nop(2)
    mfma16(a, O_[3], ST[15 % 3] + 10, P_ + 4, O_[3])
    a.nop(12)
    for i in range(4):
        for q in range(3):
            a(f"ds_write_b128 v{vLW}, {vr(O_[i]+4*q,4)} offset:{i*12288 + q*1024}")
    a("s_waitcnt lgkmcnt(0)")
    a("s_barrier")
    for q in range(3):
        a(f"ds_read_b128 {vr(R_+4*q,4)}, v{vLR} offset:{q*1024}")
    for q in range(3):
        a(f"ds_read_b128 {vr(TA+4*q,4)}, v{vLR} offset:{3072 + q*1024}")
    for q in range(3):
        a(f"ds_read_b128 {vr(TB+4*q,4)}, v{vLR} offset:{6144 + q*1024}")
    a("s_waitcnt lgkmcnt(3)")
    for r in range(11):
        a(f"v_add_f32 v{R_+r}, v{R_+r}, v{TA+r}")
    for q in range(3):
        a(f"ds_read_b128 {vr(TA+4*q,4)}, v{vLR} offset:{9216 + q*1024}")
    a("s_waitcnt lgkmcnt(3)")
    for r in range(11):
        a(f"v_add_f32 v{R_+r}, v{R_+r}, v{TB+r}")
    a("s_waitcnt lgkmcnt(0)")
    for r in range(11):
        a(f"v_add_f32 v{R_+r}, v{R_+r}, v{TA+r}")
    normalize_store(a, R_, sOA, "OA", check=True)
    a(f"s_cmp_lg_u32 s{sPass}, 0")
    a("s_cbranch_scc1 K2_FIN")
    a(f"v_mov_b32 v{T0}, s{sFail}")
    a(f"s_lshl_b32 s{sA}, s{sW}, 2")
    a(f"s_add_u32 s{sA}, s{sA}, 49152")
    a(f"v_mov_b32 v{T0+1}, s{sA}")
    a(f"ds_write_b32 v{T0+1}, v{T0}")
    if diag: diag_mark(a, 2)
    a(f"v_lshrrev_b32 v{T0}, 5, v0")
    a(f"v_and_b32 v{T0+1}, 31, v0")
    a(f"v_lshlrev_b32 v{T0}, 3, v{T0}")
    a(f"v_sub_u32 v{T0}, v{T0+1}, v{T0}")
    a(f"v_mov_b32 v{T0+1}, {NEG:#x}")
    kc = [16 * (r >> 3) + 4 * ((r >> 2) & 1) + (r & 3) for r in range(16)]
    for r in range(16):
        a(f"v_cmp_le_i32 s[{sCmp+2*r}:{sCmp+2*r+1}], {kc[r]}, v{T0}")
    for r in range(16):
        a(f"v_cndmask_b32 v{MD+r}, v{T0+1}, 0, s[{sCmp+2*r}:{sCmp+2*r+1}]")
    for r in range(16):
        a(f"v_cndmask_b32 v{MF+r}, 0, v{T0+1}, s[{sCmp+2*r}:{sCmp+2*r+1}]")
    a(f"v_mov_b32 v{T0}, 0x3f803f80")
    a(f"v_mov_b32 v{T0+1}, 0x3f80")
    a(f"v_cndmask_b32 v{QB+5}, v{T0+1}, 0, s[{sLo}:{sLo+1}]")
    for j in range(9):
        a(f"s_add_i32 s{sA}, s{sT8}, {j}")
        a(f"s_cmp_lt_i32 s{sA}, 0")
        a(f"s_cselect_b32 s{sA}, 0xf14a, 0")
        a(f"v_mov_b32 v{T0+1}, s{sA}")
        a(f"v_cndmask_b32 v{KB[j]+5}, v{T0+1}, v{T0}, s[{sLo}:{sLo+1}]")
    a.wait_vm("KB")
    def cmask(j): return MF if j == 0 else (MD if j == 8 else "0")
    mx = [T0, T0 + 1]
    mfma16(a, S_[0], KB[0], QB, cmask(0))
    mfma8(a, S_[0], KB[0] + 4, QB + 4, S_[0])
    for j in range(9):
        s = S_[j % 2]; sn = S_[(j + 1) % 2]
        if j + 1 < 9:
            mfma16(a, sn, KB[j+1], QB, cmask(j + 1))
            mfma8(a, sn, KB[j+1] + 4, QB + 4, sn)
            a.nop(10 if j == 0 else 2)
        else:
            a.nop(4)
        for r in range(0, 16, 4):
            if j == 0 and r == 0:
                a(f"v_max_f32 v{mx[0]}, v{s}, v{s+1}")
                a(f"v_max_f32 v{mx[1]}, v{s+2}, v{s+3}")
            else:
                a(f"v_max3_f32 v{mx[0]}, v{mx[0]}, v{s+r}, v{s+r+1}")
                a(f"v_max3_f32 v{mx[1]}, v{mx[1]}, v{s+r+2}, v{s+r+3}")
    a(f"v_max_f32 v{T0}, v{mx[0]}, v{mx[1]}")
    a(f"v_mov_b32 v{T0+1}, v{T0}")
    a.nop(2)
    a(f"v_permlane32_swap_b32 v{T0}, v{T0+1}")
    a(f"v_max_f32 v{T0}, v{T0}, v{T0+1}")
    split_neg_max(a, T0, QB + 5, T0 + 2)
    a.nop(2)
    VBR = [16, 24]
    a(f"v_and_b32 v{T0+4}, 31, v0")
    a(f"v_lshrrev_b32 v{T0+5}, 5, v0")
    a(f"v_mul_u32_u24 v{T0+5}, 304, v{T0+5}")
    a(f"v_lshl_add_u32 v{T0+4}, v{T0+4}, 4, v{T0+5}")
    def read_vb(j):
        b_tile_index(a, j)
        a(f"s_sub_u32 s{sA}, s{sA}, s{sVt0}")
        a(f"s_mul_i32 s{sA}, s{sA}, 1216")
        a(f"s_add_u32 s{sA}, s{sA}, {VBL}")
        a(f"v_add_u32 v{T0+5}, s{sA}, v{T0+4}")
        a(f"ds_read_b128 {vr(VBR[j%2],4)}, v{T0+5}")
        a(f"ds_read_b128 {vr(VBR[j%2]+4,4)}, v{T0+5} offset:608")
    read_vb(0)
    mfma16(a, S_[0], KB[0], QB, cmask(0))
    mfma8(a, S_[0], KB[0] + 4, QB + 4, S_[0])
    a.nop(12)
    for j in range(9):
        s = S_[j % 2]; sn = S_[(j + 1) % 2]
        if j + 1 < 9:
            mfma16(a, sn, KB[j+1], QB, cmask(j + 1))
        exps(a, s, 0)
        if j + 1 < 9:
            mfma8(a, sn, KB[j+1] + 4, QB + 4, sn)
        exps(a, s, 4)
        if j > 0:
            mfma16(a, OB, VBR[(j-1)%2] + 4, P_ + 4, OB)
        exps(a, s, 8)
        a("s_waitcnt lgkmcnt(0)")
        mfma16(a, OB, VBR[j%2], P_, "0" if j == 0 else OB)
        if j + 1 < 9: read_vb(j + 1)
        exps(a, s, 12)
    a.nop(2)
    mfma16(a, OB, VBR[0] + 4, P_ + 4, OB)
    a.nop(12)
    normalize_store(a, OB, sOB, "OB", check=False)
    a("s_waitcnt lgkmcnt(0)")
    a("s_barrier")
    a(f"v_mov_b32 v{T0}, 49152")
    a(f"ds_read_b128 {vr(T0+1+0,4) if False else 'v[12:15]'}, v{T0}")
    a("s_waitcnt lgkmcnt(0)")
    a("v_or_b32 v12, v12, v13")
    a("v_or3_b32 v12, v12, v14, v15")
    a("s_nop 0")
    a(f"v_readfirstlane_b32 s{sA}, v12")
    a("s_nop 3")
    a(f"s_cmp_eq_u32 s{sA}, 0")
    a("s_cbranch_scc1 K2_FIN")
    a("s_waitcnt vmcnt(0)")
    a(f"s_mov_b32 s{sPass}, 1")
    for st in ST:
        a(f"v_mov_b32 v{st+5}, 0x3f803f80")
    for i in range(4):
        a(f"v_mov_b32 v{QA[i]+5}, 0")
        a(f"buffer_load_dwordx4 {vr(QA[i],4)}, v{vKm}, s[8:11], s{sQm} offen offset:{i*1024}")
        a(f"buffer_load_dword v{QA[i]+4}, v{vQr}, s[8:11], s{sQr} offen offset:{i*128}")
    mxs = [T0, T0 + 1, T0 + 2, T0 + 3]
    for i in range(4):
        a(f"v_mov_b32 v{mxs[i]}, 0xff7fffff")
    a(f"s_mov_b32 s{sA}, s{sKm[0]}")
    a(f"s_mov_b32 s{sB}, s{sKr}")
    a(f"s_mov_b32 s{sCmp}, 16")
    a.label("K2_FB_LOOP")
    a(f"buffer_load_dwordx4 {vr(ST[0],4)}, v{vKm}, s[8:11], s{sA} offen")
    a(f"buffer_load_dword v{ST[0]+4}, v{vKr}, s[8:11], s{sB} offen")
    a("s_waitcnt vmcnt(0)")
    for i in range(4):
        mfma16(a, S_[0], ST[0], QA[i], "0")
        mfma8(a, S_[0], ST[0] + 4, QA[i] + 4, S_[0])
        a.nop(12)
        for r in range(0, 16, 2):
            a(f"v_max3_f32 v{mxs[i]}, v{mxs[i]}, v{S_[0]+r}, v{S_[0]+r+1}")
    a(f"s_add_u32 s{sA}, s{sA}, 1024")
    a(f"s_add_u32 s{sB}, s{sB}, 128")
    a(f"s_sub_u32 s{sCmp}, s{sCmp}, 1")
    a(f"s_cmp_lg_u32 s{sCmp}, 0")
    a("s_cbranch_scc1 K2_FB_LOOP")
    for i in range(4):
        a(f"v_mov_b32 v{T0+4}, v{mxs[i]}")
        a.nop(2)
        a(f"v_permlane32_swap_b32 v{mxs[i]}, v{T0+4}")
        a(f"v_max_f32 v{mxs[i]}, v{mxs[i]}, v{T0+4}")
    a(f"s_lshl_b32 s{sA}, s{sW}, 10")
    a(f"v_add_u32 v{T0+4}, s{sA}, v{vKm}")
    a(f"v_mov_b32 v{S_[0]}, v{mxs[0]}")
    a(f"v_mov_b32 v{S_[0]+1}, v{mxs[1]}")
    a(f"v_mov_b32 v{S_[0]+2}, v{mxs[2]}")
    a(f"v_mov_b32 v{S_[0]+3}, v{mxs[3]}")
    a(f"ds_write_b128 v{T0+4}, {vr(S_[0],4)}")
    a("s_waitcnt lgkmcnt(0)")
    a("s_barrier")
    for ww in range(4):
        a(f"ds_read_b128 {vr(S_[1]+4*ww,4)}, v{vKm} offset:{ww*1024}")
    a("s_waitcnt lgkmcnt(0)")
    for i in range(4):
        a(f"v_max3_f32 v{mxs[i]}, v{S_[1]+i}, v{S_[1]+4+i}, v{S_[1]+8+i}")
        a(f"v_max_f32 v{mxs[i]}, v{mxs[i]}, v{S_[1]+12+i}")
    for i in range(4):
        split_neg_max(a, mxs[i], QA[i] + 5, T0 + 4)
    a("s_barrier")
    a("s_branch K2_A_START")
    a.label("K2_FIN")
    if diag: diag_end(a, 1, sW, 4, 16)
    a.label("K2_END")
    a("s_endpgm")
    return a.text()

K2_DESC = """
.amdhsa_kernel {name}
  .amdhsa_next_free_vgpr 248
  .amdhsa_next_free_sgpr 102
  .amdhsa_accum_offset 248
  .amdhsa_group_segment_fixed_size 0
  .amdhsa_kernarg_size 72
  .amdhsa_user_sgpr_count 2
  .amdhsa_user_sgpr_kernarg_segment_ptr 1
  .amdhsa_system_sgpr_workgroup_id_x 1
  .amdhsa_float_denorm_mode_32 3
.end_amdhsa_kernel
"""
K2_LAUNCH = f"grid=(512,1,1) block=(256,1,1) lds={VBL + 16384}"
```

```python
from asm import *
from layout import *

NS = 6
STG = 18432
XB = 6 * STG
XSTG = 16384
NCH = 18
OOB = 0x80000000

ACC = 0
FX = [112, 156]
FW = [128, 172]
AW0, AW1, AR, AX = 200, 202, 204, 206
VQ, VK, VV, VR, VSC = 212, 213, 214, 215, 216
T = 220
PF = 236
sW, sBr, sMt, sNg = 3, 12, 13, 14
sA, sB, sC = 15, 16, 17
sX, sWq = 20, 24

def acc(n, tt): return ACC + (n * 4 + tt) * 4

def pi16(a, dst, src, tmp):
    a(f"v_and_b32 v{tmp}, 4, v{src}")
    a(f"v_and_b32 v{dst}, 0xfffffff3, v{src}")
    a(f"v_lshl_or_b32 v{dst}, v{tmp}, 1, v{dst}")
    a(f"v_and_b32 v{tmp}, 8, v{src}")
    a(f"v_lshrrev_b32 v{tmp}, 1, v{tmp}")
    a(f"v_or_b32 v{dst}, v{dst}, v{tmp}")

import os
EXP = os.environ.get('K1EXP','stag,nopf')
WROW = 576
STB = os.environ.get('K1ST', 'sc1')
STP = os.environ.get('K1STP', STB)
def gen_loader(a, hi, diag=False):
    ld = diag and 'ldiag' in EXP
    nW = 4 if hi else 5
    VM = [1, 2, 3, 4, 5]; VX = 6; VT = 8
    t = 10
    a("v_and_b32 v0, 63, v0")
    a(f"s_sub_u32 s{sW}, s{sW}, 4")
    a(f"v_lshrrev_b32 v{t}, 3, v0")
    a(f"s_lshl_b32 s{sB}, s{sMt}, 7")
    a(f"s_lshl_b32 s{sC}, s{sW}, 3")
    a(f"s_add_u32 s{sB}, s{sB}, s{sC}")
    a(f"v_add_u32 v{t}, s{sB}, v{t}")
    a(f"v_bfe_u32 v{t+1}, v{t}, 1, 3")
    a(f"v_mul_u32_u24 v{t}, 1152, v{t}")
    a(f"v_and_b32 v{t+2}, 7, v0")
    a(f"v_xor_b32 v{t+1}, v{t+1}, v{t+2}")
    a(f"v_lshl_add_u32 v{VX}, v{t+1}, 4, v{t}")
    a(f"s_mul_i32 s{sA}, s{sNg}, 144")
    a(f"s_and_b32 s39, s{sA}, 63")
    a(f"s_andn2_b32 s{sA}, s{sA}, 63")
    a(f"s_add_u32 s40, s39, 144")
    for q in range(nW):
        a(f"s_lshl_b32 s{sB}, s{sW}, 6")
        a(f"s_add_u32 s{sB}, s{sB}, {256*q}")
        a(f"v_add_u32 v{t}, s{sB}, v0")
        a(f"v_mul_u32_u24 v{t+1}, 1821, v{t}")
        a(f"v_lshrrev_b32 v{t+1}, 16, v{t+1}")
        a(f"v_mul_u32_u24 v{t+2}, 36, v{t+1}")
        a(f"v_sub_u32 v{t+2}, v{t}, v{t+2}")
        a(f"v_lshrrev_b32 v{t+3}, 2, v{t+1}")
        a(f"v_and_b32 v{t+3}, 2, v{t+3}")
        a(f"v_xor_b32 v{t+2}, v{t+2}, v{t+3}")
        a(f"v_mul_u32_u24 v{t+3}, 43, v{t+2}")
        a(f"v_lshrrev_b32 v{t+3}, 9, v{t+3}")
        a(f"v_mul_u32_u24 v{t+4}, 12, v{t+3}")
        a(f"v_sub_u32 v{t+4}, v{t+2}, v{t+4}")
        a(f"v_lshlrev_b32 v{t+4}, 4, v{t+4}")
        a(f"v_mul_u32_u24 v{t+3}, 1152, v{t+3}")
        a(f"v_mul_u32_u24 v{t+5}, 3456, v{t+1}")
        a(f"v_add3_u32 v{t+5}, v{t+5}, v{t+3}, v{t+4}")
        a(f"v_add_u32 v{t+5}, s{sA}, v{t+5}")
        a(f"v_cmp_le_u32 vcc, s39, v{t+4}")
        a(f"v_cmp_gt_u32 s[42:43], s40, v{t+4}")
        a(f"v_bfrev_b32 v{t+7}, 1")
        a("s_and_b64 vcc, vcc, s[42:43]")
        a("s_nop 1")
        a(f"v_cndmask_b32 v{VM[q]}, v{t+7}, v{t+5}, vcc")
    sM = [30, 31, 32, 33, 34]; sXd = 35
    a(f"s_lshl_b32 s{sB}, s{sW}, 10")
    for q in range(nW): a(f"s_add_u32 s{sM[q]}, s{sB}, {4096*q}")
    a(f"s_add_u32 s{sXd}, s{sB}, {XB}")
    sKW, sKX = 37, 38
    if ld: diag_mark(a, 0)
    a("s_waitcnt lgkmcnt(0)")
    select_ptrs(a)
    STAG = 'stag' in EXP.split(',')
    sCC = 51
    if STAG:
        rm = int(os.environ.get('K1RM', '76543210'), 16); rn = int(os.environ.get('K1RN', '7520'), 16)
        a(f"s_bfe_u32 s{sA}, s2, 0x30003")
        a(f"s_lshl_b32 s{sA}, s{sA}, 2")
        a(f"s_lshr_b32 s{sA}, {rm:#x}, s{sA}")
        a(f"s_and_b32 s{sA}, s{sA}, 15")
        a(f"s_bfe_u32 s{sB}, s2, 0x20006")
        a(f"s_lshl_b32 s{sB}, s{sB}, 2")
        a(f"s_lshr_b32 s{sB}, {rn:#x}, s{sB}")
        a(f"s_and_b32 s{sB}, s{sB}, 15")
        a(f"s_add_u32 s{sCC}, s{sA}, s{sB}")
        a(f"s_cmp_ge_u32 s{sCC}, 9")
        a(f"s_cselect_b32 s{sA}, 9, 0")
        a(f"s_sub_u32 s{sCC}, s{sCC}, s{sA}")
        a(f"s_lshl_b32 s{sCC}, s{sCC}, 1")
    sCX = 52
    if STAG: a(f"s_lshr_b32 s{sCX}, s{sCC}, 1")
    def issue_w(c):
        st = (c % NS) * STG
        if STAG:
            a(f"s_mul_i32 s{sKW}, s{sCC}, {32 * 3456}")
            a(f"s_add_u32 s{sCC}, s{sCC}, 1")
            a(f"s_cmp_eq_u32 s{sCC}, {NCH}")
            a(f"s_cselect_b32 s{sCC}, 0, s{sCC}")
        else:
            a(f"s_mov_b32 s{sKW}, {c * 32 * 3456}")
        for q in range(0 if 'now' in EXP else nW):
            a(f"s_add_u32 m0, s{sM[q]}, {st}")
            a("s_nop 0")
            a.vmem(f"buffer_load_dwordx4 v{VM[q]}, s[{sWq}:{sWq+3}], s{sKW} offen {os.environ.get('K1WB', '')} lds", f"w{c}")
    def issue_x(sl):
        st = (sl % 3) * XSTG
        if STAG:
            a(f"s_lshl_b32 s{sKX}, s{sCX}, 7")
            a(f"s_add_u32 s{sCX}, s{sCX}, 1")
            a(f"s_cmp_eq_u32 s{sCX}, {NCH//2}")
            a(f"s_cselect_b32 s{sCX}, 0, s{sCX}")
        else:
            a(f"s_mov_b32 s{sKX}, {sl * 128}")
        for q in range(4):
            a(f"s_add_u32 m0, s{sXd}, {st + 4096*q}")
            if q: a(f"s_add_u32 s{sKX}, s{sKX}, {32*1152}")
            else: a("s_nop 0")
            a.vmem(f"buffer_load_dwordx4 v{VX}, s[{sX}:{sX+3}], s{sKX} offen {os.environ.get('K1XB', '')} lds", f"x{sl}")
    a.vm_reset()
    PD = int(os.environ.get('K1PD', '3'))
    items = [("x", 0, -1), ("w", 0, -1), ("w", 1, -1), ("x", 1, -1), ("w", 2, -1), ("w", 3, -1), ("x", 2, -1), ("w", 4, -1), ("w", 5, -1)]
    for c in range(6, NCH):
        if c % 2 == 1 and (c - 1) // 2 < NCH // 2: items.append(("x", (c - 1) // 2, c - 5))
        items.append(("w", c, c - 5))
    def emit(it):
        if it[0] == "x":
            if 'nox' not in EXP: issue_x(it[1])
        else: issue_w(it[1])
    pos = 0; nw_ = 0
    while nw_ < PD:
        emit(items[pos]); nw_ += items[pos][0] == "w"; pos += 1
    if ld: diag_mark(a, 1)
    for b in range(NCH):
        tags = [f"w{b}"] + ([f"x{b//2}"] if b % 2 == 0 else [])
        tags = [t_ for t_ in tags if t_ in a.vm]
        if tags:
            last = max(tags, key=lambda t_: max(i for i, v in enumerate(a.vm) if v == t_))
            a.wait_vm(last)
        if ld and b == 0: diag_mark(a, 2)
        a("s_barrier")
        k = 0
        while pos < len(items) and items[pos][2] <= b and k < 2:
            emit(items[pos]); k += items[pos][0] == "w"; pos += 1
    assert pos == len(items)
    if ld:
        a("s_load_dwordx2 s[4:5], s[0:1], 64")
        a("s_waitcnt lgkmcnt(0)")
        diag_end(a, 0, sW, 4, 16, waves=8)
    a("s_endpgm")

def select_ptrs(a):
    a(f"s_cmp_eq_u32 s{sBr}, 0")
    a(f"s_cselect_b32 s{sX}, s4, s8")
    a(f"s_cselect_b32 s{sX+1}, s5, s9")
    a(f"s_cselect_b32 s{sWq}, s6, s10")
    a(f"s_cselect_b32 s{sWq+1}, s7, s11")
    a(f"s_and_b32 s{sX+1}, s{sX+1}, 0xffff")
    a(f"s_and_b32 s{sWq+1}, s{sWq+1}, 0xffff")
    a(f"s_mov_b32 s{sX+2}, {S*D*2}")
    a(f"s_mov_b32 s{sX+3}, 0x00020000")
    a(f"s_mov_b32 s{sWq+2}, {D*3*D*2}")
    a(f"s_mov_b32 s{sWq+3}, 0x00020000")

sP, sPS = 56, 60
VTO, VTD = 238, 239
def gen_touch_setup(a):
    t = T; j = 62
    a(f"s_lshr_b32 s{j}, s2, 3")
    a(f"v_and_b32 v{t}, 15, v0")
    a(f"s_lshl_b32 s{sB}, s{sW}, 4")
    a(f"v_add_u32 v{t}, s{sB}, v{t}")
    a(f"s_lshl_b32 s{sB}, s{j}, 6")
    a(f"s_cmp_ge_u32 s{j}, 16")
    a("s_cbranch_scc1 K1_PF_W")
    a(f"s_and_b32 s{sA}, s2, 1")
    a(f"s_lshl_b32 s{sA}, s{sA}, 10")
    a(f"s_add_u32 s{sA}, s{sA}, s{sB}")
    a(f"v_add_u32 v{t}, s{sA}, v{t}")
    a(f"v_mul_u32_u24 v{t}, 1152, v{t}")
    a(f"s_mov_b32 s{sPS+1}, 128")
    a("s_waitcnt lgkmcnt(0)")
    a(f"s_cmp_eq_u32 s{sBr}, 0")
    a(f"s_cselect_b32 s{sP}, s4, s8")
    a(f"s_cselect_b32 s{sP+1}, s5, s9")
    a(f"s_mov_b32 s{sP+2}, {S*D*2}")
    a("s_branch K1_PF_GO")
    a.label("K1_PF_W")
    a(f"s_sub_u32 s{sB}, s{sB}, 1024")
    a(f"v_add_u32 v{t}, s{sB}, v{t}")
    a(f"v_mul_u32_u24 v{t+1}, 4370, v{t}")
    a(f"v_lshrrev_b32 v{t+1}, 16, v{t+1}")
    a(f"v_mul_u32_u24 v{t+2}, 15, v{t+1}")
    a(f"v_sub_u32 v{t+2}, v{t}, v{t+2}")
    a(f"v_mul_u32_u24 v{t+3}, 52, v{t+2}")
    a(f"v_lshrrev_b32 v{t+3}, 8, v{t+3}")
    a(f"v_mul_u32_u24 v{t+4}, {1152 - 640}, v{t+3}")
    a(f"v_lshl_add_u32 v{t+4}, v{t+2}, 7, v{t+4}")
    a(f"v_mul_u32_u24 v{t+5}, 3456, v{t+1}")
    a(f"s_bfe_u32 s{sA}, s2, 0x10001")
    a(f"s_lshl_b32 s{sA}, s{sA}, 9")
    a(f"v_add3_u32 v{t+5}, v{t+5}, v{t+4}, s{sA}")
    a(f"v_cmp_gt_u32 vcc, 64, v{t+1}")
    a(f"v_bfrev_b32 v{t}, 1")
    a(f"s_mov_b32 s{sPS+1}, {64*3456}")
    a(f"v_cndmask_b32 v{t}, v{t}, v{t+5}, vcc")
    a("s_waitcnt lgkmcnt(0)")
    a(f"s_cmp_eq_u32 s{sBr}, 0")
    a(f"s_cselect_b32 s{sP}, s6, s10")
    a(f"s_cselect_b32 s{sP+1}, s7, s11")
    a(f"s_mov_b32 s{sP+2}, {D*3*D*2}")
    a.label("K1_PF_GO")
    a(f"s_and_b32 s{sP+1}, s{sP+1}, 0xffff")
    a(f"s_mov_b32 s{sP+3}, 0x00020000")
    a(f"v_bfrev_b32 v{t+1}, 1")
    a(f"v_cmp_gt_u32 vcc, 16, v{t+8}")
    a("s_nop 1")
    a(f"v_cndmask_b32 v{VTO}, v{t+1}, v{t}, vcc")
    for sl in range(PF0): touch(a, sl)

PF = 'nopf' not in EXP
PF0 = int(os.environ.get('K1PF0', '5'))
def touch(a, sl):
    if not PF or sl >= 9: return
    a(f"s_mul_i32 s{sPS}, s{sPS+1}, {sl}")
    a(f"buffer_load_dword v{VTD}, v{VTO}, s[{sP}:{sP+3}], s{sPS} offen")

def gen_consumer(a, nw, diag):
    t = T
    L = 217
    a(f"v_and_b32 v{L}, 63, v0")
    a(f"s_and_b32 s{sC}, s{sW}, 1")
    a(f"v_lshrrev_b32 v{t}, 4, v{L}")
    a(f"v_bfe_u32 v{t+1}, v{L}, 2, 2")
    a(f"v_and_b32 v{t+2}, 3, v{L}")
    a(f"v_lshl_add_u32 v{t+3}, v{t}, 3, v{t+1}")
    a(f"v_mul_u32_u24 v{t+3}, {WROW}, v{t+3}")
    a(f"v_and_b32 v{t+5}, 1, v{t}")
    a(f"v_lshlrev_b32 v{t+5}, 5, v{t+5}")
    a(f"s_mul_i32 s{sA}, s{sNg}, 144")
    a(f"s_and_b32 s{sA}, s{sA}, 63")
    for jj, dst in ((0, AW0), (1, AW1)):
        a(f"s_add_u32 s{sB}, s{sA}, {72*nw + 40*jj}")
        a(f"v_lshl_add_u32 v{t+6}, v{t+2}, 3, s{sB}")
        a(f"v_xor_b32 v{t+6}, v{t+6}, v{t+5}")
        a(f"v_add_u32 v{dst}, v{t+6}, v{t+3}")
    a(f"v_and_b32 v{t+7}, 1, v{t+2}")
    a(f"v_mul_u32_u24 v{t+7}, 72, v{t+7}")
    a(f"s_add_u32 s{sB}, s{sA}, 32")
    a(f"v_add_u32 v{t+7}, s{sB}, v{t+7}")
    a(f"v_xor_b32 v{t+7}, v{t+7}, v{t+5}")
    if nw == 0:
        a(f"v_lshrrev_b32 v{t+4}, 1, v{t+2}")
        a(f"v_mul_u32_u24 v{t+4}, 192, v{t+4}")
        a(f"v_add3_u32 v{AR}, v{t+7}, v{t+3}, v{t+4}")
    else:
        a(f"v_add_u32 v{t+7}, 384, v{t+7}")
        a(f"v_add_u32 v{AR}, v{t+7}, v{t+3}")
    a(f"v_and_b32 v{t+6}, 15, v{L}")
    a(f"v_bfe_u32 v{t+7}, v{L}, 1, 3")
    a(f"v_xor_b32 v{t+7}, v{t+7}, v{t}")
    a(f"v_lshlrev_b32 v{t+7}, 4, v{t+7}")
    a(f"v_lshl_add_u32 v{t+7}, v{t+6}, 7, v{t+7}")
    a(f"s_lshl_b32 s{sA}, s{sC}, 13")
    a(f"s_add_u32 s{sA}, s{sA}, {XB}")
    a(f"v_add_u32 v{AX}, s{sA}, v{t+7}")
    a(f"v_xor_b32 v{AX+1}, 64, v{AX}")
    for base in (AW0, AW1, AR):
        a(f"v_add_u32 v{base+1}, {3*STG}, v{base}")
    a(f"v_lshlrev_b32 v{VQ}, 4, v{L}")
    pi16(a, t + 8, L, t + 9)
    a(f"v_lshlrev_b32 v{VK}, 4, v{t+8}")
    a(f"v_and_b32 v{t+9}, 1, v{t}")
    a(f"v_lshrrev_b32 v{t+10}, 1, v{t}")
    a(f"v_lshl_add_u32 v{t+9}, v{t+9}, 1, v{t+10}")
    a(f"v_mul_u32_u24 v{t+9}, {VT_CHUNK}, v{t+9}")
    a(f"v_lshl_add_u32 v{VV}, v{t+6}, 4, v{t+9}")
    if nw == 0:
        a(f"v_and_b32 v{t+10}, 15, v{t+8}")
        a(f"v_cmp_gt_u32 vcc, 32, v{L}")
        a(f"v_cndmask_b32 v{t+10}, v{t+10}, v{t+6}, vcc")
        a(f"v_and_b32 v{t+11}, 1, v{t}")
        a(f"v_lshlrev_b32 v{t+11}, 14, v{t+11}")
        a(f"v_lshl_add_u32 v{t+11}, v{t+10}, 2, v{t+11}")
        a(f"v_add_u32 v{t+10}, {KR_OFF - QR_OFF}, v{t+11}")
        a(f"v_cndmask_b32 v{VR}, v{t+10}, v{t+11}, vcc")
        a(f"s_mov_b32 s{sA}, {f2u(QSCALE):#x}")
        a(f"v_mov_b32 v{t+10}, s{sA}")
        a(f"v_cndmask_b32 v{VSC}, 1.0, v{t+10}, vcc")
    else:
        a(f"v_lshrrev_b32 v{t+10}, 1, v{t+6}")
        a(f"v_and_b32 v{t+11}, 1, v{t+6}")
        a(f"v_and_b32 v{t+12}, 2, v{t+6}")
        a(f"v_cmp_eq_u32 vcc, 0, v{t+12}")
        a(f"v_add_u32 v{t+12}, 16, v{t+11}")
        a("s_nop 0")
        a(f"v_cndmask_b32 v{t+11}, v{t+11}, v{t+12}, vcc")
        a(f"v_subrev_u32 v{t+12}, 8, v{t+6}")
        a(f"v_cmp_gt_u32 vcc, 8, v{t+6}")
        a("s_nop 1")
        a(f"v_cndmask_b32 v{t+10}, v{t+12}, v{t+10}, vcc")
        a(f"v_cndmask_b32 v{t+11}, 18, v{t+11}, vcc")
        a(f"s_mov_b32 s{sA}, {VT_HEAD}")
        a(f"v_mul_lo_u32 v{t+10}, v{t+10}, s{sA}")
        a(f"v_lshl_add_u32 v{t+10}, v{t+11}, 4, v{t+10}")
        a(f"v_add_u32 v{t+10}, v{t+10}, v{t+9}")
        a(f"v_bfrev_b32 v{t+11}, 1")
        a(f"v_cmp_gt_u32 s[40:41], 12, v{t+6}")
        a(f"v_cndmask_b32 v{VR}, v{t+11}, v{t+10}, s[40:41]")
        a("s_mov_b64 s[42:43], vcc")
    sQ, sK, sV, sR0, sR1 = 44, 45, 46, 47, 48
    a(f"s_lshl_b32 s{sA}, s{sNg}, 2")
    a(f"s_add_u32 s{sA}, s{sA}, {2*nw}")
    a(f"s_lshl_b32 s{sB}, s{sMt}, 1")
    a(f"s_add_u32 s{sB}, s{sB}, s{sC}")
    a(f"s_lshl_b32 s{sQ}, s{sA}, 16")
    a(f"s_lshl_b32 s{sK}, s{sB}, 11")
    a(f"s_add_u32 s{sQ}, s{sQ}, s{sK}")
    a(f"s_lshl_b32 s{sK}, s{sBr}, 21")
    a(f"s_add_u32 s{sQ}, s{sQ}, s{sK}")
    a(f"s_add_u32 s{sK}, s{sQ}, {KM_OFF}")
    a(f"s_mul_i32 s{sV}, s{sA}, {VT_HEAD}")
    a(f"s_mul_i32 s{sR0}, s{sB}, {8*VT_CHUNK}")
    a(f"s_add_u32 s{sV}, s{sV}, s{sR0}")
    a(f"s_mul_i32 s{sR0}, s{sBr}, {VT_BR}")
    a(f"s_add_u32 s{sV}, s{sV}, s{sR0}")
    a(f"s_add_u32 s{sV}, s{sV}, {VT_OFF}")
    if nw == 0:
        a(f"s_lshl_b32 s{sR0}, s{sA}, 13")
        a(f"s_lshl_b32 s{sR1}, s{sB}, 8")
        a(f"s_add_u32 s{sR0}, s{sR0}, s{sR1}")
        a(f"s_lshl_b32 s{sR1}, s{sBr}, 18")
        a(f"s_add_u32 s{sR0}, s{sR0}, s{sR1}")
        a(f"s_add_u32 s{sR0}, s{sR0}, {QR_OFF}")
        a(f"s_add_u32 s{sR1}, s{sR0}, {R_HEAD}")
    else:
        a(f"s_sub_u32 s{sR0}, s{sV}, {2*VT_HEAD}")
    sQ1, sK1, sV1 = 49, 50, 51
    a(f"s_add_u32 s{sQ1}, s{sQ}, {M_HEAD}")
    a(f"s_add_u32 s{sK1}, s{sK}, {M_HEAD}")
    a(f"s_add_u32 s{sV1}, s{sV}, {VT_HEAD}")
    a(f"s_mov_b32 s52, {f2u(QSCALE):#x}")
    a(f"s_mov_b32 s53, {f2u(QSCALE):#x}")
    a("s_load_dwordx2 s[20:21], s[0:1], 64")
    def reads(c):
        buf = c % 2; st = c % NS
        sset, so = st // 3, (st % 3) * STG
        out = []
        xs = [f"ds_read_b128 {vr(FX[buf]+4*tt,4)}, v{AX + c % 2} offset:{((c // 2) % 3) * XSTG + tt*2048}" for tt in range(4)]
        ws = []
        for n in range(7):
            for rd in range(2):
                d = FW[buf] + 4*n + 2*rd
                if n < 6:
                    ad = (AW0 if n % 2 == 0 else AW1) + sset
                    ws.append(f"ds_read_b64_tr_b16 {vr(d,2)}, v{ad} offset:{so + (n//2)*192 + rd*4*WROW}")
                else:
                    ws.append(f"ds_read_b64_tr_b16 {vr(d,2)}, v{AR+sset} offset:{so + rd*4*WROW}")
        return xs[:1] + ws[:2] + xs[1:] + ws[2:]
    def mfmas(c):
        buf = c % 2
        out = []
        for n in range(7):
            for tt in range(4):
                w = vr(FW[buf] + 4*n, 4); x = vr(FX[buf] + 4*tt, 4)
                dt = (n < 4) or (n == 6 and nw == 0)
                A, B = (w, x) if dt else (x, w)
                cc = "0" if c == 0 else vr(acc(n, tt), 4)
                out.append(f"v_mfma_f32_16x16x32_bf16 {vr(acc(n,tt),4)}, {A}, {B}, {cc}")
        return out
    a("s_barrier")
    if diag: diag_mark(a, 0)
    for r in reads(0): a(r)
    for c in range(NCH):
        m = mfmas(c)
        a("s_waitcnt lgkmcnt(0)")
        if c + 1 < NCH:
            rd = reads(c + 1)
            for i in range(2): a(m[i])
            a("s_barrier")
            if c % 2 == 1: touch(a, PF0 + c // 2)
            if diag and 'tl' in EXP.split(',') and c % 2 == 0: a(f"s_memtime s[{64 + c}:{65 + c}]")
            k = 0
            for i in range(2, 28):
                if 'nomfma' not in EXP: a(m[i])
                if k < len(rd) and 'noread' not in EXP: a(rd[k]); k += 1
        else:
            for x in m: a(x)
    if diag: diag_mark(a, 1)
    a("s_waitcnt vmcnt(0)")
    a("s_and_b32 s21, s21, 0xffff")
    a(f"s_mov_b32 s22, {WS_USED}")
    a("s_mov_b32 s23, 0x00020000")
    a.nop(6)
    tb = [T, T + 4, T + 8, T + 12]
    cnt = [0]
    def pack_pair(n, tt, scale):
        A = acc(n, tt); B = acc(n, tt + 1)
        d = tb[cnt[0] % 4]; cnt[0] += 1
        if scale:
            for r in (A, A + 2, B, B + 2):
                a(f"v_pk_mul_f32 {vr(r,2)}, {vr(r,2)}, s[52:53]")
        a(f"v_cvt_pk_bf16_f32 v{d}, v{A}, v{A+1}")
        a(f"v_cvt_pk_bf16_f32 v{d+1}, v{A+2}, v{A+3}")
        a(f"v_cvt_pk_bf16_f32 v{d+2}, v{B}, v{B+1}")
        a(f"v_cvt_pk_bf16_f32 v{d+3}, v{B+2}, v{B+3}")
        return d
    def swap(d):
        a.nop(2)
        a(f"v_permlane16_swap_b32 v{d}, v{d+2}")
        a(f"v_permlane16_swap_b32 v{d+1}, v{d+3}")
    for n in range(6):
        tau, jj = n // 2, n % 2
        for tt in (0, 2):
            d = pack_pair(n, tt, tau == 0)
            swap(d)
            if tau < 2:
                base = [[sQ, sQ1], [sK, sK1]][tau][jj]
                a(f"buffer_store_dwordx4 {vr(d,4)}, v{[VQ, VK][tau]}, s[20:23], s{base} offen offset:{(tt//2)*1024} {STB}")
            else:
                a(f"buffer_store_dwordx4 {vr(d,4)}, v{VV}, s[20:23], s{[sV, sV1][jj]} offen offset:{tt*2*VT_CHUNK + 32*jj} {STP}")
    if nw == 0:
        for tt in range(4):
            A = acc(6, tt)
            d = tb[cnt[0] % 4]; cnt[0] += 1
            for r in range(4):
                a(f"v_mul_f32 v{A+r}, v{A+r}, v{VSC}")
            a(f"v_cvt_pk_bf16_f32 v{d}, v{A}, v{A+1}")
            a(f"v_cvt_pk_bf16_f32 v{d+1}, v{A+2}, v{A+3}")
            a(f"buffer_store_dword v{d}, v{VR}, s[20:23], s{sR0} offen offset:{tt*64} {STP}")
            a(f"buffer_store_dword v{d+1}, v{VR}, s[20:23], s{sR1} offen offset:{tt*64} {STP}")
    else:
        a(f"v_mov_b32 v{FX[0]}, 0x3f803f80")
        for tt in (0, 2):
            d = pack_pair(6, tt, False)
            for r in range(4):
                a(f"v_cndmask_b32 v{d+r}, v{FX[0]}, v{d+r}, s[42:43]")
            swap(d)
            a(f"buffer_store_dwordx4 {vr(d,4)}, v{VR}, s[20:23], s{sR0} offen offset:{tt*2*VT_CHUNK} {STP}")
    if diag and 'ldiag' not in EXP:
        diag_mark(a, 2)
        a("s_waitcnt vmcnt(0)")
        a("s_mov_b32 s4, s20"); a("s_mov_b32 s5, s21")
        if 'tl' in EXP.split(','):
            a("s_waitcnt lgkmcnt(0)")
            a(f"s_mul_i32 s96, s2, 8")
            a(f"s_add_u32 s96, s96, s{sW}")
            a("s_lshl_b32 s96, s96, 6")
            a(f"s_add_u32 s96, s96, {DIAG_OFF + 3 * 0x100000}")
            a("s_add_u32 s98, s4, s96")
            a("s_addc_u32 s99, s5, 0")
            for i in range(9): a(f"s_sub_u32 s{64+2*i}, s{64+2*i}, s90")
            for i in range(9): a(f"v_mov_b32 v{16+i}, s{64+2*i}")
            a("v_mov_b32 v32, 0")
            for q in range(3): a(f"global_store_dwordx4 v32, v[{16+4*q}:{19+4*q}], s[98:99] offset:{16*q}")
        diag_end(a, 0, sW, 4, 16, waves=8)
    a("s_endpgm")

import struct
def f2u(x): return struct.unpack("<I", struct.pack("<f", x))[0]

def gen_k1(name="qkv_kernel", diag=False):
    a = Asm()
    a(f".p2align 8\n.type {name},@function")
    a.label(name)
    a("s_cmp_ge_u32 s2, 256")
    a("s_cbranch_scc1 K1_END")
    if diag: diag_start(a)
    a("s_load_dwordx4 s[4:7], s[0:1], 0")
    a("s_load_dwordx4 s[8:11], s[0:1], 24")
    a("v_lshrrev_b32 v1, 6, v0")
    a(f"s_bfe_u32 s{sBr}, s2, 0x10002")
    a(f"v_readfirstlane_b32 s{sW}, v1")
    a(f"s_and_b32 s{sA}, s2, 1")
    a(f"s_bfe_u32 s{sB}, s2, 0x10001")
    a(f"s_bfe_u32 s{sMt}, s2, 0x30003")
    a(f"s_lshl_b32 s{sA}, s{sA}, 3")
    a(f"s_or_b32 s{sMt}, s{sMt}, s{sA}")
    a(f"s_bfe_u32 s{sNg}, s2, 0x20006")
    a(f"s_lshl_b32 s{sB}, s{sB}, 2")
    a(f"s_or_b32 s{sNg}, s{sNg}, s{sB}")
    a(f"s_cmp_lt_u32 s{sW}, 4")
    a("s_cbranch_scc1 K1_CONS")
    a(f"s_cmp_ge_u32 s{sW}, 6")
    a("s_cbranch_scc1 K1_LOADER1")
    gen_loader(a, 0, diag)
    a.label("K1_LOADER1")
    gen_loader(a, 1, diag)
    a.label("K1_CONS")
    if PF:
        a(f"v_and_b32 v{T+8}, 63, v0")
        gen_touch_setup(a)
    a(f"s_cmp_ge_u32 s{sW}, 2")
    a("s_cbranch_scc1 K1_CONS1")
    gen_consumer(a, 0, diag)
    a.label("K1_CONS1")
    gen_consumer(a, 1, diag)
    a.label("K1_END")
    a("s_endpgm")
    return a.text()

K1_DESC = """
.amdhsa_kernel {name}
  .amdhsa_next_free_vgpr 240
  .amdhsa_next_free_sgpr 102
  .amdhsa_accum_offset 240
  .amdhsa_group_segment_fixed_size 0
  .amdhsa_kernarg_size 72
  .amdhsa_user_sgpr_count 2
  .amdhsa_user_sgpr_kernarg_segment_ptr 1
  .amdhsa_system_sgpr_workgroup_id_x 1
  .amdhsa_float_denorm_mode_32 3
.end_amdhsa_kernel
"""
K1_LAUNCH = f"grid=(256,1,1) block=(512,1,1) lds={XB + 3*XSTG}"
```

```python
from asm import *
from layout import *

NS = 6
STG = 18432
XB = 6 * STG
XSTG = 16384
NCH = 18
OOB = 0x80000000

ACC = 0
FX = [112, 156]
FW = [128, 172]
AW0, AW1, AR, AX = 200, 202, 204, 206
VQ, VK, VV, VR, VSC = 212, 213, 214, 215, 216
T = 220
PF = 236
sW, sBr, sMt, sNg = 3, 12, 13, 14
sA, sB, sC = 15, 16, 17
sX, sWq = 20, 24

def acc(n, tt): return ACC + (n * 4 + tt) * 4

def pi16(a, dst, src, tmp):
    a(f"v_and_b32 v{tmp}, 4, v{src}")
    a(f"v_and_b32 v{dst}, 0xfffffff3, v{src}")
    a(f"v_lshl_or_b32 v{dst}, v{tmp}, 1, v{dst}")
    a(f"v_and_b32 v{tmp}, 8, v{src}")
    a(f"v_lshrrev_b32 v{tmp}, 1, v{tmp}")
    a(f"v_or_b32 v{dst}, v{dst}, v{tmp}")

import os
EXP = os.environ.get('K1EXP','stag,nopf')
WROW = 576
STB = os.environ.get('K1ST', 'sc1')
STP = os.environ.get('K1STP', '')
def gen_loader(a, hi, diag=False):
    ld = diag and 'ldiag' in EXP
    nW = 4 if hi else 5
    VM = [1, 2, 3, 4, 5]; VX = 6; VT = 8
    t = 10
    if os.environ.get('K1PRIO', '3') != '0': a(f"s_setprio {os.environ.get('K1PRIO', '3')}")
    a("v_and_b32 v0, 63, v0")
    a(f"s_sub_u32 s{sW}, s{sW}, 4")
    a(f"v_lshrrev_b32 v{t}, 3, v0")
    a(f"s_lshl_b32 s{sB}, s{sMt}, 7")
    a(f"s_lshl_b32 s{sC}, s{sW}, 3")
    a(f"s_add_u32 s{sB}, s{sB}, s{sC}")
    a(f"v_add_u32 v{t}, s{sB}, v{t}")
    a(f"v_bfe_u32 v{t+1}, v{t}, 1, 3")
    a(f"v_mul_u32_u24 v{t}, 1152, v{t}")
    a(f"v_and_b32 v{t+2}, 7, v0")
    a(f"v_xor_b32 v{t+1}, v{t+1}, v{t+2}")
    a(f"v_lshl_add_u32 v{VX}, v{t+1}, 4, v{t}")
    a(f"s_mul_i32 s{sA}, s{sNg}, 144")
    a(f"s_and_b32 s39, s{sA}, 63")
    a(f"s_andn2_b32 s41, s{sA}, 63")
    a(f"s_add_u32 s40, s39, 144")
    def calc_w(q):
        a(f"s_lshl_b32 s{sB}, s{sW}, 6")
        a(f"s_add_u32 s{sB}, s{sB}, {256*q}")
        a(f"v_add_u32 v{t}, s{sB}, v0")
        a(f"v_mul_u32_u24 v{t+1}, 1821, v{t}")
        a(f"v_lshrrev_b32 v{t+1}, 16, v{t+1}")
        a(f"v_mul_u32_u24 v{t+2}, 36, v{t+1}")
        a(f"v_sub_u32 v{t+2}, v{t}, v{t+2}")
        a(f"v_lshrrev_b32 v{t+3}, 2, v{t+1}")
        a(f"v_and_b32 v{t+3}, 2, v{t+3}")
        a(f"v_xor_b32 v{t+2}, v{t+2}, v{t+3}")
        a(f"v_mul_u32_u24 v{t+3}, 43, v{t+2}")
        a(f"v_lshrrev_b32 v{t+3}, 9, v{t+3}")
        a(f"v_mul_u32_u24 v{t+4}, 12, v{t+3}")
        a(f"v_sub_u32 v{t+4}, v{t+2}, v{t+4}")
        a(f"v_lshlrev_b32 v{t+4}, 4, v{t+4}")
        a(f"v_mul_u32_u24 v{t+3}, 1152, v{t+3}")
        a(f"v_mul_u32_u24 v{t+5}, 3456, v{t+1}")
        a(f"v_add3_u32 v{t+5}, v{t+5}, v{t+3}, v{t+4}")
        a(f"v_add_u32 v{t+5}, s41, v{t+5}")
        a(f"v_cmp_le_u32 vcc, s39, v{t+4}")
        a(f"v_cmp_gt_u32 s[42:43], s40, v{t+4}")
        a(f"v_bfrev_b32 v{t+7}, 1")
        a("s_and_b64 vcc, vcc, s[42:43]")
        a("s_nop 1")
        a(f"v_cndmask_b32 v{VM[q]}, v{t+7}, v{t+5}, vcc")
    sM = [30, 31, 32, 33, 34]; sXd = 35
    a(f"s_lshl_b32 s{sB}, s{sW}, 10")
    for q in range(nW): a(f"s_add_u32 s{sM[q]}, s{sB}, {4096*q}")
    a(f"s_add_u32 s{sXd}, s{sB}, {XB}")
    sKW, sKX = 37, 38
    if ld: diag_mark(a, 0)
    a("s_waitcnt lgkmcnt(0)")
    select_ptrs(a)
    STAG = 'stag' in EXP.split(',')
    sCC = 51
    if STAG:
        rm = int(os.environ.get('K1RM', '76543210'), 16); rn = int(os.environ.get('K1RN', '7520'), 16)
        a(f"s_bfe_u32 s{sA}, s2, 0x30003")
        a(f"s_lshl_b32 s{sA}, s{sA}, 2")
        a(f"s_lshr_b32 s{sA}, {rm:#x}, s{sA}")
        a(f"s_and_b32 s{sA}, s{sA}, 15")
        a(f"s_bfe_u32 s{sB}, s2, 0x20006")
        a(f"s_lshl_b32 s{sB}, s{sB}, 2")
        a(f"s_lshr_b32 s{sB}, {rn:#x}, s{sB}")
        a(f"s_and_b32 s{sB}, s{sB}, 15")
        a(f"s_add_u32 s{sCC}, s{sA}, s{sB}")
        a(f"s_cmp_ge_u32 s{sCC}, 9")
        a(f"s_cselect_b32 s{sA}, 9, 0")
        a(f"s_sub_u32 s{sCC}, s{sCC}, s{sA}")
        a(f"s_lshl_b32 s{sCC}, s{sCC}, 1")
    sCX = 52
    if STAG: a(f"s_lshr_b32 s{sCX}, s{sCC}, 1")
    def issue_w(c):
        st = (c % NS) * STG
        if STAG:
            a(f"s_mul_i32 s{sKW}, s{sCC}, {32 * 3456}")
            a(f"s_add_u32 s{sCC}, s{sCC}, 1")
            a(f"s_cmp_eq_u32 s{sCC}, {NCH}")
            a(f"s_cselect_b32 s{sCC}, 0, s{sCC}")
        else:
            a(f"s_mov_b32 s{sKW}, {c * 32 * 3456}")
        for q in range(0 if 'now' in EXP else nW):
            if c == 0: calc_w(q)
            a(f"s_add_u32 m0, s{sM[q]}, {st}")
            a("s_nop 0")
            a.vmem(f"buffer_load_dwordx4 v{VM[q]}, s[{sWq}:{sWq+3}], s{sKW} offen {os.environ.get('K1WB', '')} lds", f"w{c}")
    def issue_x(sl):
        st = (sl % 3) * XSTG
        if STAG:
            a(f"s_lshl_b32 s{sKX}, s{sCX}, 7")
            a(f"s_add_u32 s{sCX}, s{sCX}, 1")
            a(f"s_cmp_eq_u32 s{sCX}, {NCH//2}")
            a(f"s_cselect_b32 s{sCX}, 0, s{sCX}")
        else:
            a(f"s_mov_b32 s{sKX}, {sl * 128}")
        for q in range(4):
            a(f"s_add_u32 m0, s{sXd}, {st + 4096*q}")
            if q: a(f"s_add_u32 s{sKX}, s{sKX}, {32*1152}")
            else: a("s_nop 0")
            a.vmem(f"buffer_load_dwordx4 v{VX}, s[{sX}:{sX+3}], s{sKX} offen {os.environ.get('K1XB', '')} lds", f"x{sl}")
    a.vm_reset()
    PD = int(os.environ.get('K1PD', '3'))
    items = [("x", 0, -1), ("w", 0, -1), ("w", 1, -1), ("x", 1, -1), ("w", 2, -1), ("w", 3, -1), ("x", 2, -1), ("w", 4, -1), ("w", 5, -1)]
    for c in range(6, NCH):
        if c % 2 == 1 and (c - 1) // 2 < NCH // 2: items.append(("x", (c - 1) // 2, c - 5))
        items.append(("w", c, c - 5))
    def emit(it):
        if it[0] == "x":
            if 'nox' not in EXP: issue_x(it[1])
        else: issue_w(it[1])
    pos = 0; nw_ = 0
    while nw_ < PD:
        emit(items[pos]); nw_ += items[pos][0] == "w"; pos += 1
    if ld: diag_mark(a, 1)
    for b in range(NCH):
        tags = [f"w{b}"] + ([f"x{b//2}"] if b % 2 == 0 else [])
        tags = [t_ for t_ in tags if t_ in a.vm]
        if tags:
            last = max(tags, key=lambda t_: max(i for i, v in enumerate(a.vm) if v == t_))
            a.wait_vm(last)
        if ld and b == 0: diag_mark(a, 2)
        a("s_barrier")
        k = 0
        while pos < len(items) and items[pos][2] <= b and k < 2:
            emit(items[pos]); k += items[pos][0] == "w"; pos += 1
    assert pos == len(items)
    if ld:
        a("s_load_dwordx2 s[4:5], s[0:1], 64")
        a("s_waitcnt lgkmcnt(0)")
        diag_end(a, 0, sW, 4, 16, waves=8)
    a("s_endpgm")

def select_ptrs(a):
    a(f"s_cmp_eq_u32 s{sBr}, 0")
    a(f"s_cselect_b32 s{sX}, s4, s8")
    a(f"s_cselect_b32 s{sX+1}, s5, s9")
    a(f"s_cselect_b32 s{sWq}, s6, s10")
    a(f"s_cselect_b32 s{sWq+1}, s7, s11")
    a(f"s_and_b32 s{sX+1}, s{sX+1}, 0xffff")
    a(f"s_and_b32 s{sWq+1}, s{sWq+1}, 0xffff")
    a(f"s_mov_b32 s{sX+2}, {S*D*2}")
    a(f"s_mov_b32 s{sX+3}, 0x00020000")
    a(f"s_mov_b32 s{sWq+2}, {D*3*D*2}")
    a(f"s_mov_b32 s{sWq+3}, 0x00020000")

sP, sPS = 56, 60
VTO, VTD = 238, 239
def gen_touch_setup(a):
    t = T; j = 62
    a(f"s_lshr_b32 s{j}, s2, 3")
    a(f"v_and_b32 v{t}, 15, v0")
    a(f"s_lshl_b32 s{sB}, s{sW}, 4")
    a(f"v_add_u32 v{t}, s{sB}, v{t}")
    a(f"s_lshl_b32 s{sB}, s{j}, 6")
    a(f"s_cmp_ge_u32 s{j}, 16")
    a("s_cbranch_scc1 K1_PF_W")
    a(f"s_and_b32 s{sA}, s2, 1")
    a(f"s_lshl_b32 s{sA}, s{sA}, 10")
    a(f"s_add_u32 s{sA}, s{sA}, s{sB}")
    a(f"v_add_u32 v{t}, s{sA}, v{t}")
    a(f"v_mul_u32_u24 v{t}, 1152, v{t}")
    a(f"s_mov_b32 s{sPS+1}, 128")
    a("s_waitcnt lgkmcnt(0)")
    a(f"s_cmp_eq_u32 s{sBr}, 0")
    a(f"s_cselect_b32 s{sP}, s4, s8")
    a(f"s_cselect_b32 s{sP+1}, s5, s9")
    a(f"s_mov_b32 s{sP+2}, {S*D*2}")
    a("s_branch K1_PF_GO")
    a.label("K1_PF_W")
    a(f"s_sub_u32 s{sB}, s{sB}, 1024")
    a(f"v_add_u32 v{t}, s{sB}, v{t}")
    a(f"v_mul_u32_u24 v{t+1}, 4370, v{t}")
    a(f"v_lshrrev_b32 v{t+1}, 16, v{t+1}")
    a(f"v_mul_u32_u24 v{t+2}, 15, v{t+1}")
    a(f"v_sub_u32 v{t+2}, v{t}, v{t+2}")
    a(f"v_mul_u32_u24 v{t+3}, 52, v{t+2}")
    a(f"v_lshrrev_b32 v{t+3}, 8, v{t+3}")
    a(f"v_mul_u32_u24 v{t+4}, {1152 - 640}, v{t+3}")
    a(f"v_lshl_add_u32 v{t+4}, v{t+2}, 7, v{t+4}")
    a(f"v_mul_u32_u24 v{t+5}, 3456, v{t+1}")
    a(f"s_bfe_u32 s{sA}, s2, 0x10001")
    a(f"s_lshl_b32 s{sA}, s{sA}, 9")
    a(f"v_add3_u32 v{t+5}, v{t+5}, v{t+4}, s{sA}")
    a(f"v_cmp_gt_u32 vcc, 64, v{t+1}")
    a(f"v_bfrev_b32 v{t}, 1")
    a(f"s_mov_b32 s{sPS+1}, {64*3456}")
    a(f"v_cndmask_b32 v{t}, v{t}, v{t+5}, vcc")
    a("s_waitcnt lgkmcnt(0)")
    a(f"s_cmp_eq_u32 s{sBr}, 0")
    a(f"s_cselect_b32 s{sP}, s6, s10")
    a(f"s_cselect_b32 s{sP+1}, s7, s11")
    a(f"s_mov_b32 s{sP+2}, {D*3*D*2}")
    a.label("K1_PF_GO")
    a(f"s_and_b32 s{sP+1}, s{sP+1}, 0xffff")
    a(f"s_mov_b32 s{sP+3}, 0x00020000")
    a(f"v_bfrev_b32 v{t+1}, 1")
    a(f"v_cmp_gt_u32 vcc, 16, v{t+8}")
    a("s_nop 1")
    a(f"v_cndmask_b32 v{VTO}, v{t+1}, v{t}, vcc")
    for sl in range(PF0): touch(a, sl)

PF = 'nopf' not in EXP
PF0 = int(os.environ.get('K1PF0', '5'))
def touch(a, sl):
    if not PF or sl >= 9: return
    a(f"s_mul_i32 s{sPS}, s{sPS+1}, {sl}")
    a(f"buffer_load_dword v{VTD}, v{VTO}, s[{sP}:{sP+3}], s{sPS} offen")

def gen_consumer(a, nw, diag):
    t = T
    L = 217
    a(f"v_and_b32 v{L}, 63, v0")
    a(f"s_and_b32 s{sC}, s{sW}, 1")
    a(f"v_lshrrev_b32 v{t}, 4, v{L}")
    a(f"v_bfe_u32 v{t+1}, v{L}, 2, 2")
    a(f"v_and_b32 v{t+2}, 3, v{L}")
    a(f"v_lshl_add_u32 v{t+3}, v{t}, 3, v{t+1}")
    a(f"v_mul_u32_u24 v{t+3}, {WROW}, v{t+3}")
    a(f"v_and_b32 v{t+5}, 1, v{t}")
    a(f"v_lshlrev_b32 v{t+5}, 5, v{t+5}")
    a(f"s_mul_i32 s{sA}, s{sNg}, 144")
    a(f"s_and_b32 s{sA}, s{sA}, 63")
    for jj, dst in ((0, AW0), (1, AW1)):
        a(f"s_add_u32 s{sB}, s{sA}, {72*nw + 40*jj}")
        a(f"v_lshl_add_u32 v{t+6}, v{t+2}, 3, s{sB}")
        a(f"v_xor_b32 v{t+6}, v{t+6}, v{t+5}")
        a(f"v_add_u32 v{dst}, v{t+6}, v{t+3}")
    a(f"v_and_b32 v{t+7}, 1, v{t+2}")
    a(f"v_mul_u32_u24 v{t+7}, 72, v{t+7}")
    a(f"s_add_u32 s{sB}, s{sA}, 32")
    a(f"v_add_u32 v{t+7}, s{sB}, v{t+7}")
    a(f"v_xor_b32 v{t+7}, v{t+7}, v{t+5}")
    if nw == 0:
        a(f"v_lshrrev_b32 v{t+4}, 1, v{t+2}")
        a(f"v_mul_u32_u24 v{t+4}, 192, v{t+4}")
        a(f"v_add3_u32 v{AR}, v{t+7}, v{t+3}, v{t+4}")
    else:
        a(f"v_add_u32 v{t+7}, 384, v{t+7}")
        a(f"v_add_u32 v{AR}, v{t+7}, v{t+3}")
    a(f"v_and_b32 v{t+6}, 15, v{L}")
    a(f"v_bfe_u32 v{t+7}, v{L}, 1, 3")
    a(f"v_xor_b32 v{t+7}, v{t+7}, v{t}")
    a(f"v_lshlrev_b32 v{t+7}, 4, v{t+7}")
    a(f"v_lshl_add_u32 v{t+7}, v{t+6}, 7, v{t+7}")
    a(f"s_lshl_b32 s{sA}, s{sC}, 13")
    a(f"s_add_u32 s{sA}, s{sA}, {XB}")
    a(f"v_add_u32 v{AX}, s{sA}, v{t+7}")
    a(f"v_xor_b32 v{AX+1}, 64, v{AX}")
    for base in (AW0, AW1, AR):
        a(f"v_add_u32 v{base+1}, {3*STG}, v{base}")
    a(f"v_lshlrev_b32 v{VQ}, 4, v{L}")
    pi16(a, t + 8, L, t + 9)
    a(f"v_lshlrev_b32 v{VK}, 4, v{t+8}")
    a(f"v_and_b32 v{t+9}, 1, v{t}")
    a(f"v_lshrrev_b32 v{t+10}, 1, v{t}")
    a(f"v_lshl_add_u32 v{t+9}, v{t+9}, 1, v{t+10}")
    a(f"v_mul_u32_u24 v{t+9}, {VT_CHUNK}, v{t+9}")
    a(f"v_lshl_add_u32 v{VV}, v{t+6}, 4, v{t+9}")
    if nw == 0:
        a(f"v_and_b32 v{t+10}, 15, v{t+8}")
        a(f"v_cmp_gt_u32 vcc, 32, v{L}")
        a(f"v_cndmask_b32 v{t+10}, v{t+10}, v{t+6}, vcc")
        a(f"v_and_b32 v{t+11}, 1, v{t}")
        a(f"v_lshlrev_b32 v{t+11}, 14, v{t+11}")
        a(f"v_lshl_add_u32 v{t+11}, v{t+10}, 2, v{t+11}")
        a(f"v_add_u32 v{t+10}, {KR_OFF - QR_OFF}, v{t+11}")
        a(f"v_cndmask_b32 v{VR}, v{t+10}, v{t+11}, vcc")
        a(f"s_mov_b32 s{sA}, {f2u(QSCALE):#x}")
        a(f"v_mov_b32 v{t+10}, s{sA}")
        a(f"v_cndmask_b32 v{VSC}, 1.0, v{t+10}, vcc")
    else:
        a(f"v_lshrrev_b32 v{t+10}, 1, v{t+6}")
        a(f"v_and_b32 v{t+11}, 1, v{t+6}")
        a(f"v_and_b32 v{t+12}, 2, v{t+6}")
        a(f"v_cmp_eq_u32 vcc, 0, v{t+12}")
        a(f"v_add_u32 v{t+12}, 16, v{t+11}")
        a("s_nop 0")
        a(f"v_cndmask_b32 v{t+11}, v{t+11}, v{t+12}, vcc")
        a(f"v_subrev_u32 v{t+12}, 8, v{t+6}")
        a(f"v_cmp_gt_u32 vcc, 8, v{t+6}")
        a("s_nop 1")
        a(f"v_cndmask_b32 v{t+10}, v{t+12}, v{t+10}, vcc")
        a(f"v_cndmask_b32 v{t+11}, 18, v{t+11}, vcc")
        a(f"s_mov_b32 s{sA}, {VT_HEAD}")
        a(f"v_mul_lo_u32 v{t+10}, v{t+10}, s{sA}")
        a(f"v_lshl_add_u32 v{t+10}, v{t+11}, 4, v{t+10}")
        a(f"v_add_u32 v{t+10}, v{t+10}, v{t+9}")
        a(f"v_bfrev_b32 v{t+11}, 1")
        a(f"v_cmp_gt_u32 s[40:41], 12, v{t+6}")
        a(f"v_cndmask_b32 v{VR}, v{t+11}, v{t+10}, s[40:41]")
        a("s_mov_b64 s[42:43], vcc")
    sQ, sK, sV, sR0, sR1 = 44, 45, 46, 47, 48
    a(f"s_lshl_b32 s{sA}, s{sNg}, 2")
    a(f"s_add_u32 s{sA}, s{sA}, {2*nw}")
    a(f"s_lshl_b32 s{sB}, s{sMt}, 1")
    a(f"s_add_u32 s{sB}, s{sB}, s{sC}")
    a(f"s_lshl_b32 s{sQ}, s{sA}, 16")
    a(f"s_lshl_b32 s{sK}, s{sB}, 11")
    a(f"s_add_u32 s{sQ}, s{sQ}, s{sK}")
    a(f"s_lshl_b32 s{sK}, s{sBr}, 21")
    a(f"s_add_u32 s{sQ}, s{sQ}, s{sK}")
    a(f"s_add_u32 s{sK}, s{sQ}, {KM_OFF}")
    a(f"s_mul_i32 s{sV}, s{sA}, {VT_HEAD}")
    a(f"s_mul_i32 s{sR0}, s{sB}, {8*VT_CHUNK}")
    a(f"s_add_u32 s{sV}, s{sV}, s{sR0}")
    a(f"s_mul_i32 s{sR0}, s{sBr}, {VT_BR}")
    a(f"s_add_u32 s{sV}, s{sV}, s{sR0}")
    a(f"s_add_u32 s{sV}, s{sV}, {VT_OFF}")
    if nw == 0:
        a(f"s_lshl_b32 s{sR0}, s{sA}, 13")
        a(f"s_lshl_b32 s{sR1}, s{sB}, 8")
        a(f"s_add_u32 s{sR0}, s{sR0}, s{sR1}")
        a(f"s_lshl_b32 s{sR1}, s{sBr}, 18")
        a(f"s_add_u32 s{sR0}, s{sR0}, s{sR1}")
        a(f"s_add_u32 s{sR0}, s{sR0}, {QR_OFF}")
        a(f"s_add_u32 s{sR1}, s{sR0}, {R_HEAD}")
    else:
        a(f"s_sub_u32 s{sR0}, s{sV}, {2*VT_HEAD}")
    sQ1, sK1, sV1 = 49, 50, 51
    a(f"s_add_u32 s{sQ1}, s{sQ}, {M_HEAD}")
    a(f"s_add_u32 s{sK1}, s{sK}, {M_HEAD}")
    a(f"s_add_u32 s{sV1}, s{sV}, {VT_HEAD}")
    a(f"s_mov_b32 s52, {f2u(QSCALE):#x}")
    a(f"s_mov_b32 s53, {f2u(QSCALE):#x}")
    a("s_load_dwordx2 s[20:21], s[0:1], 64")
    def reads(c):
        buf = c % 2; st = c % NS
        sset, so = st // 3, (st % 3) * STG
        out = []
        xs = [f"ds_read_b128 {vr(FX[buf]+4*tt,4)}, v{AX + c % 2} offset:{((c // 2) % 3) * XSTG + tt*2048}" for tt in range(4)]
        ws = []
        for n in range(7):
            for rd in range(2):
                d = FW[buf] + 4*n + 2*rd
                if n < 6:
                    ad = (AW0 if n % 2 == 0 else AW1) + sset
                    ws.append(f"ds_read_b64_tr_b16 {vr(d,2)}, v{ad} offset:{so + (n//2)*192 + rd*4*WROW}")
                else:
                    ws.append(f"ds_read_b64_tr_b16 {vr(d,2)}, v{AR+sset} offset:{so + rd*4*WROW}")
        return xs[:1] + ws[:2] + xs[1:] + ws[2:]
    def mfmas(c):
        buf = c % 2
        out = []
        for n in range(7):
            for tt in range(4):
                w = vr(FW[buf] + 4*n, 4); x = vr(FX[buf] + 4*tt, 4)
                dt = (n < 4) or (n == 6 and nw == 0)
                A, B = (w, x) if dt else (x, w)
                cc = "0" if c == 0 else vr(acc(n, tt), 4)
                out.append(f"v_mfma_f32_16x16x32_bf16 {vr(acc(n,tt),4)}, {A}, {B}, {cc}")
        return out
    a("s_barrier")
    if diag: diag_mark(a, 0)
    for r in reads(0): a(r)
    for c in range(NCH):
        m = mfmas(c)
        a("s_waitcnt lgkmcnt(0)")
        if c + 1 < NCH:
            rd = reads(c + 1)
            for i in range(2): a(m[i])
            a("s_barrier")
            if c % 2 == 1: touch(a, PF0 + c // 2)
            if diag and 'tl' in EXP.split(',') and c % 2 == 0: a(f"s_memtime s[{64 + c}:{65 + c}]")
            k = 0
            for i in range(2, 28):
                if 'nomfma' not in EXP: a(m[i])
                if k < len(rd) and 'noread' not in EXP: a(rd[k]); k += 1
        else:
            for x in m: a(x)
    if diag: diag_mark(a, 1)
    a("s_waitcnt vmcnt(0)")
    a("s_and_b32 s21, s21, 0xffff")
    a(f"s_mov_b32 s22, {WS_USED}")
    a("s_mov_b32 s23, 0x00020000")
    a.nop(6)
    tb = [T, T + 4, T + 8, T + 12]
    cnt = [0]
    def pack_pair(n, tt, scale):
        A = acc(n, tt); B = acc(n, tt + 1)
        d = tb[cnt[0] % 4]; cnt[0] += 1
        if scale:
            for r in (A, A + 2, B, B + 2):
                a(f"v_pk_mul_f32 {vr(r,2)}, {vr(r,2)}, s[52:53]")
        a(f"v_cvt_pk_bf16_f32 v{d}, v{A}, v{A+1}")
        a(f"v_cvt_pk_bf16_f32 v{d+1}, v{A+2}, v{A+3}")
        a(f"v_cvt_pk_bf16_f32 v{d+2}, v{B}, v{B+1}")
        a(f"v_cvt_pk_bf16_f32 v{d+3}, v{B+2}, v{B+3}")
        return d
    def swap(d):
        a.nop(2)
        a(f"v_permlane16_swap_b32 v{d}, v{d+2}")
        a(f"v_permlane16_swap_b32 v{d+1}, v{d+3}")
    for n in range(6):
        tau, jj = n // 2, n % 2
        for tt in (0, 2):
            d = pack_pair(n, tt, tau == 0)
            swap(d)
            if tau < 2:
                base = [[sQ, sQ1], [sK, sK1]][tau][jj]
                a(f"buffer_store_dwordx4 {vr(d,4)}, v{[VQ, VK][tau]}, s[20:23], s{base} offen offset:{(tt//2)*1024} {STB if (tau == 0 or 'qonly' not in EXP.split(',')) else ''}")
            else:
                if 'vlin' in EXP.split(','):
                    a(f"buffer_store_dwordx4 {vr(d,4)}, v{VQ}, s[20:23], s{[sV, sV1][jj]} offen offset:{(tt//2)*1024} {STB}")
                else:
                    a(f"buffer_store_dwordx4 {vr(d,4)}, v{VV}, s[20:23], s{[sV, sV1][jj]} offen offset:{tt*2*VT_CHUNK + 32*jj} {STP}")
    if nw == 0:
        for tt in range(4):
            A = acc(6, tt)
            d = tb[cnt[0] % 4]; cnt[0] += 1
            for r in range(4):
                a(f"v_mul_f32 v{A+r}, v{A+r}, v{VSC}")
            a(f"v_cvt_pk_bf16_f32 v{d}, v{A}, v{A+1}")
            a(f"v_cvt_pk_bf16_f32 v{d+1}, v{A+2}, v{A+3}")
            a(f"buffer_store_dword v{d}, v{VR}, s[20:23], s{sR0} offen offset:{tt*64} {STP}")
            a(f"buffer_store_dword v{d+1}, v{VR}, s[20:23], s{sR1} offen offset:{tt*64} {STP}")
    else:
        a(f"v_mov_b32 v{FX[0]}, 0x3f803f80")
        for tt in (0, 2):
            d = pack_pair(6, tt, False)
            for r in range(4):
                a(f"v_cndmask_b32 v{d+r}, v{FX[0]}, v{d+r}, s[42:43]")
            swap(d)
            a(f"buffer_store_dwordx4 {vr(d,4)}, v{VR}, s[20:23], s{sR0} offen offset:{tt*2*VT_CHUNK} {STP}")
    if diag and 'ldiag' not in EXP:
        diag_mark(a, 2)
        a("s_waitcnt vmcnt(0)")
        a("s_mov_b32 s4, s20"); a("s_mov_b32 s5, s21")
        if 'tl' in EXP.split(','):
            a("s_waitcnt lgkmcnt(0)")
            a(f"s_mul_i32 s96, s2, 8")
            a(f"s_add_u32 s96, s96, s{sW}")
            a("s_lshl_b32 s96, s96, 6")
            a(f"s_add_u32 s96, s96, {DIAG_OFF + 3 * 0x100000}")
            a("s_add_u32 s98, s4, s96")
            a("s_addc_u32 s99, s5, 0")
            for i in range(9): a(f"s_sub_u32 s{64+2*i}, s{64+2*i}, s90")
            for i in range(9): a(f"v_mov_b32 v{16+i}, s{64+2*i}")
            a("v_mov_b32 v32, 0")
            for q in range(3): a(f"global_store_dwordx4 v32, v[{16+4*q}:{19+4*q}], s[98:99] offset:{16*q}")
        diag_end(a, 0, sW, 4, 16, waves=8)
    a("s_endpgm")

import struct
def f2u(x): return struct.unpack("<I", struct.pack("<f", x))[0]

def gen_k1(name="qkv_kernel", diag=False):
    a = Asm()
    a(f".p2align 8\n.type {name},@function")
    a.label(name)
    a("s_cmp_ge_u32 s2, 256")
    a("s_cbranch_scc1 K1_END")
    if diag: diag_start(a)
    a("s_load_dwordx4 s[4:7], s[0:1], 0")
    a("s_load_dwordx4 s[8:11], s[0:1], 24")
    a("v_lshrrev_b32 v1, 6, v0")
    a(f"s_bfe_u32 s{sBr}, s2, 0x10002")
    a(f"v_readfirstlane_b32 s{sW}, v1")
    a(f"s_and_b32 s{sA}, s2, 1")
    a(f"s_bfe_u32 s{sB}, s2, 0x10001")
    a(f"s_bfe_u32 s{sMt}, s2, 0x30003")
    a(f"s_lshl_b32 s{sA}, s{sA}, 3")
    a(f"s_or_b32 s{sMt}, s{sMt}, s{sA}")
    a(f"s_bfe_u32 s{sNg}, s2, 0x20006")
    a(f"s_lshl_b32 s{sB}, s{sB}, 2")
    a(f"s_or_b32 s{sNg}, s{sNg}, s{sB}")
    a(f"s_cmp_lt_u32 s{sW}, 4")
    a("s_cbranch_scc1 K1_CONS")
    a(f"s_cmp_ge_u32 s{sW}, 6")
    a("s_cbranch_scc1 K1_LOADER1")
    gen_loader(a, 0, diag)
    a.label("K1_LOADER1")
    gen_loader(a, 1, diag)
    a.label("K1_CONS")
    if PF:
        a(f"v_and_b32 v{T+8}, 63, v0")
        gen_touch_setup(a)
    a(f"s_cmp_ge_u32 s{sW}, 2")
    a("s_cbranch_scc1 K1_CONS1")
    gen_consumer(a, 0, diag)
    a.label("K1_CONS1")
    gen_consumer(a, 1, diag)
    a.label("K1_END")
    a("s_endpgm")
    return a.text()

K1_DESC = """
.amdhsa_kernel {name}
  .amdhsa_next_free_vgpr 240
  .amdhsa_next_free_sgpr 102
  .amdhsa_accum_offset 240
  .amdhsa_group_segment_fixed_size 0
  .amdhsa_kernarg_size 72
  .amdhsa_user_sgpr_count 2
  .amdhsa_user_sgpr_kernarg_segment_ptr 1
  .amdhsa_system_sgpr_workgroup_id_x 1
  .amdhsa_float_denorm_mode_32 3
.end_amdhsa_kernel
"""
K1_LAUNCH = f"grid=(256,1,1) block=(512,1,1) lds={XB + 3*XSTG}"
```

```python
from asm import *
from layout import *

import os
STB = os.environ.get('K2ST', 'sc1')
NEG = 0xF149F2CA
vKm, vKr, vV, vQr, vO, vO3, vLW, vLR = 1, 2, 3, 4, 5, 6, 7, 8
T0 = 9
O_ = [16, 32, 48, 64]
S_ = [80, 96]
P_ = 112
QA = [120, 126, 132, 138]
ST = [144, 158, 172]
QB = 186
KB = [192 + 6 * i for i in range(9)]
VB = [16 + 8 * i for i in range(8)] + [120]
OB = 128
R_ = 144
TA, TB = 156, 168
MD, MF = 144, 160
sSRD = 8
sHead, sG, sW, sPass = 12, 13, 14, 15
sKm = [16, 17, 18, 19]; sKr = 20; sV = [21, 22, 23, 24, 25, 26]
sQm, sQr, sOA, sOB = 27, 28, 29, 30
sT8, sKmB, sKrB, sVB, sQmB, sQrB = 31, 32, 33, 34, 35, 36
sA, sB = 37, 38
sLo = 72
sFail = 39
sVt0, sVG, sVL = 74, 75, 76
VBL = 49280
sCmp = 40

def mfma16(a, d, x, y, c):
    a(f"v_mfma_f32_32x32x16_bf16 {vr(d,16)}, {vr(x,4)}, {vr(y,4)}, {c if isinstance(c,str) else vr(c,16)}")
def mfma8(a, d, x, y, c):
    a(f"v_mfma_f32_32x32x8_bf16 {vr(d,16)}, {vr(x,2)}, {vr(y,2)}, {vr(c,16)}")

def load_k(a, kt, tag):
    st = ST[kt % 3]
    a.vmem(f"buffer_load_dwordx4 {vr(st,4)}, v{vKm}, s[8:11], s{sKm[kt//4]} offen offset:{(kt%4)*1024}", tag)
    a.vmem(f"buffer_load_dword v{st+4}, v{vKr}, s[8:11], s{sKr} offen offset:{kt*128}", tag)
def load_v(a, kt, tag):
    st = ST[kt % 3]
    o = (kt % 3) * 1216
    a.vmem(f"buffer_load_dwordx4 {vr(st+6,4)}, v{vV}, s[8:11], s{sV[kt//3]} offen offset:{o}", tag)
    a.vmem(f"buffer_load_dwordx4 {vr(st+10,4)}, v{vV}, s[8:11], s{sV[kt//3]} offen offset:{o+608}", tag)

def exps(a, s, lo):
    for r in range(lo, lo + 4):
        a(f"v_exp_f32 v{s+r}, v{s+r}")
    a(f"v_cvt_pk_bf16_f32 v{P_+lo//2}, v{s+lo}, v{s+lo+1}")
    a(f"v_cvt_pk_bf16_f32 v{P_+lo//2+1}, v{s+lo+2}, v{s+lo+3}")

def b_tile_index(a, i):
    a(f"s_add_i32 s{sA}, s{sT8}, {i}")
    a(f"s_max_i32 s{sA}, s{sA}, 0")

def normalize_store(a, R, sO, tag, check):
    a(f"v_mov_b32 v{T0}, v{R+10}")
    a(f"v_mov_b32 v{T0+1}, v{R+10}")
    a.nop(2)
    a(f"v_permlane32_swap_b32 v{T0}, v{T0+1}")
    if check:
        a(f"v_add_f32 v{T0+2}, |v{R}|, |v{R+1}|")
        for r in range(2, 10):
            a(f"v_add_f32 v{T0+2}, v{T0+2}, |v{R+r}|")
        a(f"s_mov_b32 s{sA}, 0x1f800000")
        a(f"s_mov_b32 s{sB}, 0x5f800000")
        a(f"v_cmp_le_f32 s[78:79], s{sA}, v{T0}")
        a(f"v_cmp_ge_f32 s[80:81], s{sB}, v{T0}")
        a(f"s_mov_b32 s{sA}, 0x7e800000")
        a(f"v_cmp_gt_f32 s[6:7], s{sA}, v{T0+2}")
    a(f"v_rcp_f32 v{T0}, v{T0}")
    if check:
        a("s_nop 3")
        a("s_and_b64 s[78:79], s[78:79], s[80:81]")
        a("s_and_b64 s[78:79], s[78:79], s[6:7]")
        a("s_cmp_eq_u64 s[78:79], -1")
        a(f"s_cselect_b32 s{sFail}, 0, 1")
    else:
        a.nop(1)
    for r in range(10):
        a(f"v_mul_f32 v{R+r}, v{R+r}, v{T0}")
    a(f"v_cvt_pk_bf16_f32 v{T0+1}, v{R+8}, v{R+9}")
    a(f"v_cvt_pk_bf16_f32 v{T0+3}, v{R}, v{R+1}")
    a(f"v_cvt_pk_bf16_f32 v{T0+4}, v{R+2}, v{R+3}")
    a(f"v_cvt_pk_bf16_f32 v{T0+5}, v{R+4}, v{R+5}")
    a(f"v_cvt_pk_bf16_f32 v{T0+6}, v{R+6}, v{R+7}")
    a.vmem(f"buffer_store_dword v{T0+1}, v{vO3}, s[8:11], s{sO} offen {STB}", tag)
    a.vmem(f"buffer_store_dwordx4 {vr(T0+3,4)}, v{vO}, s[8:11], s{sO} offen {STB}", tag)

def split_neg_max(a, vm, dst, tmp):
    a(f"v_sub_f32 v{tmp}, 0, v{vm}")
    a(f"v_and_b32 v{tmp+1}, 0xffff0000, v{tmp}")
    a(f"v_sub_f32 v{tmp}, v{tmp}, v{tmp+1}")
    a(f"v_cvt_pk_bf16_f32 v{tmp}, v{tmp+1}, v{tmp}")
    a(f"v_cndmask_b32 v{dst}, v{dst}, v{tmp}, s[{sLo}:{sLo+1}]")

LADDER = {int(x.split(':')[0]): int(x.split(':')[1]) for x in os.environ.get('K2LAD', '0:3,30:2,50:1,60:0').split(',') if x}
TAILP = os.environ.get('K2TAILP', '')
PKV, PKR, PKD = 246, 234, 242
PKS, PKO = 48, 52
def pack_setup(a):
    u, q, nt, c, ng, x = 62, 63, 64, 65, 66, 67
    a("s_load_dwordx2 s[48:49], s[0:1], 16")
    a("s_load_dwordx2 s[50:51], s[0:1], 40")
    a(f"s_lshl_b32 s{u}, s2, 2")
    a(f"s_add_u32 s{u}, s{u}, s{sW}")
    a(f"s_mul_i32 s{q}, s{u}, 52429")
    a(f"s_lshr_b32 s{q}, s{q}, 18")
    a(f"s_mul_i32 s{nt}, s{q}, 5")
    a(f"s_sub_u32 s{nt}, s{u}, s{nt}")
    a(f"s_mul_i32 s{ng}, s{q}, 3641")
    a(f"s_lshr_b32 s{ng}, s{ng}, 16")
    a(f"s_mul_i32 s{c}, s{ng}, 18")
    a(f"s_sub_u32 s{c}, s{q}, s{c}")
    a(f"s_lshl_b32 s{PKO+8}, s{u}, 10")
    a(f"s_add_u32 s{PKO+8}, s{PKO+8}, {WP_OFF}")
    t = T0
    a(f"v_and_b32 v{t}, 15, v0")
    a(f"v_lshrrev_b32 v{t+1}, 4, v0")
    a(f"s_lshl_b32 s{x}, s{nt}, 4")
    a(f"v_add_u32 v{t}, s{x}, v{t}")
    a(f"v_cmp_gt_u32 vcc, 72, v{t}")
    a(f"s_and_b32 s{x}, s{ng}, 7")
    a(f"s_mul_i32 s{x}, s{x}, 144")
    a(f"v_lshl_add_u32 v{t}, v{t}, 1, s{x}")
    a(f"v_lshrrev_b32 v{t+2}, 1, v{t+1}")
    a(f"v_mul_u32_u24 v{t+2}, 18, v{t+2}")
    a(f"v_and_b32 v{t+3}, 1, v{t+1}")
    a(f"v_lshl_add_u32 v{t+2}, v{t+3}, 2, v{t+2}")
    a(f"v_mul_u32_u24 v{t+3}, 72, v{t+1}")
    a(f"s_cmp_lt_u32 s{c}, 16")
    a(f"s_cselect_b64 s[68:69], -1, 0")
    a(f"v_cndmask_b32 v{t+2}, v{t+3}, v{t+2}, s[68:69]")
    a(f"s_mul_i32 s{x}, s{c}, 36")
    a(f"s_sub_u32 s{q}, s{c}, 16")
    a(f"s_mul_i32 s{q}, s{q}, 288")
    a(f"s_add_u32 s{q}, s{q}, 16")
    a(f"s_cmp_lt_u32 s{c}, 16")
    a(f"s_cselect_b32 s{x}, s{x}, s{q}")
    a(f"v_add_u32 v{t+2}, s{x}, v{t+2}")
    a(f"v_mul_u32_u24 v{t+2}, 1152, v{t+2}")
    a(f"v_add_u32 v{t}, v{t}, v{t+2}")
    a(f"v_bfrev_b32 v{t+1}, 1")
    a(f"s_cmp_lt_u32 s{u}, {WP_UNITS}")
    a(f"s_cselect_b64 s[70:71], -1, 0")
    a(f"s_and_b64 vcc, vcc, s[70:71]")
    a(f"v_lshlrev_b32 v{t+2}, 4, v0")
    a(f"v_cndmask_b32 v{PKV}, v{t+1}, v{t}, vcc")
    a(f"v_cndmask_b32 v{PKV+1}, v{t+1}, v{t+2}, s[70:71]")
    for j in range(8):
        m = ((j & 3) + 8 * (j >> 2)) * 1152
        r = ((j >> 1) * 18 + (j & 1)) * 1152
        a(f"s_mov_b32 s{x}, {r}")
        a(f"s_cmp_lt_u32 s{c}, 16")
        a(f"s_cselect_b32 s{PKO+j}, {m}, s{x}")
    a("s_waitcnt lgkmcnt(0)")
    a(f"s_cmp_ge_u32 s{ng}, 8")
    a(f"s_cselect_b32 s{PKS}, s50, s48")
    a(f"s_cselect_b32 s{PKS+1}, s51, s49")
    a(f"s_and_b32 s{PKS+1}, s{PKS+1}, 0xffff")
    a(f"s_mov_b32 s{PKS+2}, {D*D*2}")
    a(f"s_mov_b32 s{PKS+3}, 0x00020000")

def gen_k2(name="attn_kernel", diag=False):
    a = Asm()
    a(f".p2align 8\n.type {name},@function")
    a.label(name)
    a("s_cmp_ge_u32 s2, 512")
    a("s_cbranch_scc1 K2_END")
    if diag: diag_start(a)
    a("s_load_dwordx2 s[4:5], s[0:1], 64")
    a("v_lshrrev_b32 v9, 6, v0")
    a("v_and_b32 v0, 63, v0")
    a(f"v_readfirstlane_b32 s{sW}, v9")
    a("s_and_b32 s3, s2, 7")
    a("s_lshl_b32 s3, s3, 2")
    a(f"s_bfe_u32 s{sHead}, s2, 0x20003")
    a(f"s_or_b32 s{sHead}, s{sHead}, s3")
    a(f"s_lshr_b32 s{sG}, s2, 5")
    a(f"s_mov_b32 s{sPass}, 0")
    a(f"s_mov_b32 s{sLo}, -1")
    a(f"s_mov_b32 s{sLo+1}, 0")
    a(f"s_lshl_b32 s{sA}, s{sHead}, 16")
    a(f"s_lshl_b32 s{sB}, s{sW}, 14")
    a(f"s_add_u32 s{sKm[0]}, s{sA}, s{sB}")
    a(f"s_add_u32 s{sKm[0]}, s{sKm[0]}, {KM_OFF}")
    a(f"s_lshl_b32 s{sB}, s{sG}, 12")
    a(f"s_add_u32 s{sQm}, s{sA}, s{sB}")
    a(f"s_lshl_b32 s{sA}, s{sHead}, 13")
    a(f"s_lshl_b32 s{sB}, s{sW}, 11")
    a(f"s_add_u32 s{sKr}, s{sA}, s{sB}")
    a(f"s_add_u32 s{sKr}, s{sKr}, {KR_OFF}")
    a(f"s_lshl_b32 s{sB}, s{sG}, 9")
    a(f"s_add_u32 s{sQr}, s{sA}, s{sB}")
    a(f"s_add_u32 s{sQr}, s{sQr}, {QR_OFF}")
    a(f"s_mul_i32 s{sA}, s{sHead}, {VT_HEAD}")
    a(f"s_mul_i32 s{sB}, s{sW}, {16*1216}")
    a(f"s_add_u32 s{sV[0]}, s{sA}, s{sB}")
    a(f"s_add_u32 s{sV[0]}, s{sV[0]}, {VT_OFF}")
    a(f"v_lshlrev_b32 v{vKm}, 4, v0")
    a(f"v_and_b32 v9, 31, v0")
    a(f"v_lshlrev_b32 v{vKr}, 2, v9")
    a(f"v_lshrrev_b32 v10, 5, v0")
    a(f"v_bfrev_b32 v11, 1")
    a(f"v_cmp_gt_u32 s[40:41], 32, v0")
    a(f"v_mul_u32_u24 v12, 304, v10")
    a(f"v_cmp_gt_u32 vcc, 19, v9")
    a(f"v_lshl_add_u32 v12, v9, 4, v12")
    a(f"v_cndmask_b32 v{vQr}, v11, v{vKr}, s[40:41]")
    a(f"v_cndmask_b32 v{vV}, v11, v12, vcc")
    a("s_waitcnt lgkmcnt(0)")
    a("s_mov_b32 s8, s4")
    a("s_and_b32 s9, s5, 0xffff")
    a(f"s_mov_b32 s10, {WS_USED}")
    a("s_mov_b32 s11, 0x00020000")
    for q in QA:
        a(f"v_mov_b32 v{q+5}, 0")
    a.label("K2_A_START")
    def load_q(i):
        a.vmem(f"buffer_load_dwordx4 {vr(QA[i],4)}, v{vKm}, s[8:11], s{sQm} offen offset:{i*1024}", f"QA{i}")
        a.vmem(f"buffer_load_dword v{QA[i]+4}, v{vQr}, s[8:11], s{sQr} offen offset:{i*128}", f"QA{i}")
    load_k(a, 0, "K0"); load_q(0); load_q(1); load_v(a, 0, "V0"); load_q(2); load_q(3)
    for st in ST:
        a(f"v_mov_b32 v{st+5}, 0x3f803f80")
    a(f"v_and_b32 v9, 31, v0")
    a(f"v_lshrrev_b32 v10, 5, v0")
    a(f"v_bfrev_b32 v11, 1")
    a(f"v_cmp_gt_u32 s[40:41], 32, v0")
    a(f"v_lshrrev_b32 v13, 4, v9")
    a(f"v_mul_u32_u24 v13, {O_BLK}, v13")
    a(f"v_and_b32 v14, 15, v9")
    a(f"v_lshl_add_u32 v13, v14, 4, v13")
    a(f"v_lshl_add_u32 v{vO}, v10, 8, v13")
    a(f"s_lshr_b32 s{sA}, s{sHead}, 2")
    a(f"s_lshl_b32 s{sA}, s{sA}, 8")
    a(f"s_and_b32 s{sB}, s{sHead}, 3")
    a(f"s_lshl_b32 s{sB}, s{sB}, 2")
    a(f"s_add_u32 s{sA}, s{sA}, s{sB}")
    a(f"s_lshl_b32 s{sB}, s{sHead}, 9")
    a(f"s_sub_u32 s{sA}, s{sA}, s{sB}")
    a(f"s_add_u32 s{sA}, s{sA}, {16*1024}")
    a(f"v_add_u32 v13, s{sA}, v13")
    a(f"v_cndmask_b32 v{vO3}, v11, v13, s[40:41]")
    for j in range(1, 4):
        a(f"s_add_u32 s{sKm[j]}, s{sKm[0]}, {4096*j}")
    a(f"s_lshl_b32 s{sA}, s{sHead}, 16")
    a(f"s_add_u32 s{sKmB}, s{sA}, {KM_OFF + M_BR}")
    a(f"s_lshl_b32 s{sB}, s{sW}, 10")
    a(f"s_add_u32 s{sQmB}, s{sQm}, s{sB}")
    a(f"s_add_u32 s{sQmB}, s{sQmB}, {QM_OFF + M_BR}")
    a(f"s_lshl_b32 s{sA}, s{sHead}, 13")
    a(f"s_add_u32 s{sKrB}, s{sA}, {KR_OFF + R_BR}")
    a(f"s_lshl_b32 s{sB}, s{sW}, 7")
    a(f"s_add_u32 s{sQrB}, s{sQr}, s{sB}")
    a(f"s_add_u32 s{sQrB}, s{sQrB}, {R_BR}")
    a(f"s_mul_i32 s{sA}, s{sHead}, {VT_HEAD}")
    a(f"s_add_u32 s{sVB}, s{sA}, {VT_OFF + VT_BR}")
    for j in range(1, 6):
        a(f"s_add_u32 s{sV[j]}, s{sV[0]}, {3648*j}")
    a(f"s_lshl_b32 s{sA}, s{sG}, 2")
    a(f"s_add_u32 s{sA}, s{sA}, s{sW}")
    a(f"s_sub_i32 s{sT8}, s{sA}, 8")
    a(f"s_mul_i32 s{sA}, s{sA}, {2*O_BLK}")
    a(f"s_lshl_b32 s{sB}, s{sHead}, 9")
    a(f"s_add_u32 s{sOA}, s{sA}, s{sB}")
    a(f"s_add_u32 s{sOA}, s{sOA}, {O_OFF}")
    a(f"s_add_u32 s{sOB}, s{sOA}, {O_BR}")
    a(f"s_lshl_b32 s{sVt0}, s{sG}, 2")
    a(f"s_sub_i32 s{sVt0}, s{sVt0}, 8")
    a(f"s_max_i32 s{sVt0}, s{sVt0}, 0")
    a(f"s_mul_i32 s{sVG}, s{sVt0}, 1216")
    a(f"s_add_u32 s{sVG}, s{sVG}, s{sVB}")
    a(f"s_lshl_b32 s{sVL}, s{sW}, 10")
    a(f"s_add_u32 s{sVG}, s{sVG}, s{sVL}")
    a(f"s_add_u32 s{sVL}, s{sVL}, {VBL}")
    a(f"s_mul_i32 s{sB}, s{sW}, 7680")
    a(f"v_add_u32 v{vLR}, s{sB}, v{vKm}")
    pack_setup(a)
    a.wait_vm("QA0")
    if diag: diag_mark(a, 0)
    mfma16(a, S_[0], ST[0], QA[0], "0")
    mfma8(a, S_[0], ST[0] + 4, QA[0] + 4, S_[0])
    a.nop(12)
    NT = 64
    for t in range(NT):
        kt, i = divmod(t, 4)
        s = S_[t % 2]; sn = S_[(t + 1) % 2]
        kn, in_ = divmod(t + 1, 4)
        if t in LADDER: a(f"s_setprio {LADDER[t]}")
        if t == 0: load_k(a, 1, "K1")
        if t == 1: load_v(a, 1, "V1")
        if t == 2: load_k(a, 2, "K2")
        if t == 3: load_v(a, 2, "V2")
        if t == 4:
            for j in range(8):
                a.vmem(f"buffer_load_ushort v{PKR+j}, v{PKV}, s[{PKS}:{PKS+3}], s{PKO+j} offen", "PK")
        if t == 17:
            a.wait_vm("PK")
            for j in range(4):
                a(f"v_lshl_or_b32 v{PKD+j}, v{PKR+2*j+1}, 16, v{PKR+2*j}")
            a.vmem(f"buffer_store_dwordx4 {vr(PKD,4)}, v{PKV+1}, s[8:11], s{PKO+8} offen {STB}", "PKS")
        if i == 3 and kt + 3 < 16:
            load_k(a, kt + 3, f"K{kt+3}")
        if i == 1 and kt >= 1 and kt + 2 < 16:
            load_v(a, kt + 2, f"V{kt+2}")
        if i == 2 and 4 <= kt <= 12:
            j = kt - 4
            b_tile_index(a, j)
            a(f"s_lshl_b32 s{sB}, s{sA}, 10")
            a(f"s_add_u32 s{sB}, s{sB}, s{sKmB}")
            a.vmem(f"buffer_load_dwordx4 {vr(KB[j],4)}, v{vKm}, s[8:11], s{sB} offen", "KB")
            a(f"s_lshl_b32 s{sB}, s{sA}, 7")
            a(f"s_add_u32 s{sB}, s{sB}, s{sKrB}")
            a.vmem(f"buffer_load_dword v{KB[j]+4}, v{vKr}, s[8:11], s{sB} offen", "KB")
        if i == 2 and kt == 13:
            a.vmem(f"buffer_load_dwordx4 {vr(QB,4)}, v{vKm}, s[8:11], s{sQmB} offen", "KB")
            a.vmem(f"buffer_load_dword v{QB+4}, v{vQr}, s[8:11], s{sQrB} offen", "KB")
        if 20 <= t < 36:
            r = t - 20
            kc = 16 * (r >> 3) + 4 * ((r >> 2) & 1) + (r & 3)
            m = sum(1 << l for l in range(64) if kc <= (l & 31) - 8 * (l >> 5))
            a(f"s_mov_b32 s{sCmp+2*r}, {m & 0xffffffff:#x}")
            a(f"s_mov_b32 s{sCmp+2*r+1}, {m >> 32:#x}")
        if t == 33:
            for q in range(4):
                a(f"s_add_u32 m0, s{sVL}, {4096*q}")
                a(f"s_add_u32 s{sA}, s{sVG}, {4096*q}")
                a.vmem(f"buffer_load_dwordx4 v{vKm}, s[8:11], s{sA} offen lds", "VBL")
        if t + 1 < NT:
            if in_ == 0:
                a.wait_vm(f"K{kn}")
            if t < 3: a.wait_vm(f"QA{t+1}")
            mfma16(a, sn, ST[kn % 3], QA[in_], "0")
        exps(a, s, 0)
        if t + 1 < NT:
            mfma8(a, sn, ST[kn % 3] + 4, QA[in_] + 4, sn)
        exps(a, s, 4)
        if t > 0:
            kp, ip = divmod(t - 1, 4)
            mfma16(a, O_[ip], ST[kp % 3] + 10, P_ + 4, O_[ip])
        exps(a, s, 8)
        if i == 0:
            a.wait_vm(f"V{kt}")
        mfma16(a, O_[i], ST[kt % 3] + 6, P_, "0" if kt == 0 else O_[i])
        exps(a, s, 12)
    if TAILP != '': a(f"s_setprio {TAILP}")
    if diag: diag_mark(a, 1)
    a.nop(2)
    mfma16(a, O_[3], ST[15 % 3] + 10, P_ + 4, O_[3])
    a.nop(12)
    MB, SL = 7680, 2560
    for w in range(4):
        if w: a.label(f"K2_CMB{w}")
        if w < 3:
            a(f"s_cmp_lg_u32 s{sW}, {w}")
            a(f"s_cbranch_scc1 K2_CMB{w+1}")
        for i in range(4):
            if i == w: continue
            o = i * MB + (w if w < i else w - 1) * SL
            for q in range(2):
                a(f"ds_write_b128 v{vKm}, {vr(O_[i]+4*q,4)} offset:{o + q*1024}")
        a(f"s_mov_b64 exec, s[{sLo}:{sLo+1}]")
        for i in range(4):
            if i == w: continue
            o = i * MB + (w if w < i else w - 1) * SL
            a(f"ds_write_b128 v{vKm}, {vr(O_[i]+8,4)} offset:{o + 2048}")
        a("s_mov_b64 exec, -1")
        for r in range(11): a(f"v_mov_b32 v{R_+r}, v{O_[w]+r}")
        if w < 3: a("s_branch K2_CMBD")
    a.label("K2_CMBD")
    a("s_waitcnt lgkmcnt(0)")
    a("s_barrier")
    def rd(dst, slot):
        for q in range(2):
            a(f"ds_read_b128 {vr(dst+4*q,4)}, v{vLR} offset:{slot*SL + q*1024}")
    def rdh(dst, slot):
        a(f"ds_read_b128 {vr(dst+8,4)}, v{vLR} offset:{slot*SL + 2048}")
    TC = 16
    rd(TA, 0); rd(TB, 1); rd(TC, 2)
    a(f"s_mov_b64 exec, s[{sLo}:{sLo+1}]")
    rdh(TA, 0); rdh(TB, 1); rdh(TC, 2)
    a("s_mov_b64 exec, -1")
    a("s_waitcnt lgkmcnt(5)")
    for r in range(8):
        a(f"v_add_f32 v{R_+r}, v{R_+r}, v{TA+r}")
    a("s_waitcnt lgkmcnt(3)")
    for r in range(8):
        a(f"v_add_f32 v{TB+r}, v{TB+r}, v{TC+r}")
    for r in range(8):
        a(f"v_add_f32 v{R_+r}, v{R_+r}, v{TB+r}")
    a("s_waitcnt lgkmcnt(0)")
    a(f"s_mov_b64 exec, s[{sLo}:{sLo+1}]")
    for r in range(8, 11):
        a(f"v_add_f32 v{R_+r}, v{R_+r}, v{TA+r}")
        a(f"v_add_f32 v{TB+r}, v{TB+r}, v{TC+r}")
    for r in range(8, 11):
        a(f"v_add_f32 v{R_+r}, v{R_+r}, v{TB+r}")
    a("s_mov_b64 exec, -1")
    normalize_store(a, R_, sOA, "OA", check=True)
    a(f"s_cmp_lg_u32 s{sPass}, 0")
    a("s_cbranch_scc1 K2_FIN")
    a(f"v_mov_b32 v{T0}, s{sFail}")
    a(f"s_lshl_b32 s{sA}, s{sW}, 2")
    a(f"s_add_u32 s{sA}, s{sA}, 49152")
    a(f"v_mov_b32 v{T0+1}, s{sA}")
    a(f"ds_write_b32 v{T0+1}, v{T0}")
    if diag: diag_mark(a, 2)
    a(f"v_mov_b32 v{T0+1}, {NEG:#x}")
    for r in range(16):
        a(f"v_cndmask_b32 v{MD+r}, v{T0+1}, 0, s[{sCmp+2*r}:{sCmp+2*r+1}]")
    for r in range(16):
        a(f"v_xor_b32 v{MF+r}, v{T0+1}, v{MD+r}")
    a(f"v_mov_b32 v{T0}, 0x3f803f80")
    a(f"v_mov_b32 v{T0+1}, 0x3f80")
    a(f"v_cndmask_b32 v{QB+5}, v{T0+1}, 0, s[{sLo}:{sLo+1}]")
    for j in range(9):
        a(f"v_cndmask_b32 v{KB[j]+5}, 0, v{T0}, s[{sLo}:{sLo+1}]")
    a(f"s_cmp_ge_i32 s{sT8}, 0")
    a("s_cbranch_scc1 K2_B_VALID")
    for j in range(8):
        a(f"s_add_i32 s{sA}, s{sT8}, {j}")
        a(f"s_cmp_lt_i32 s{sA}, 0")
        a(f"s_cselect_b32 s{sA}, 0xf14a, 0")
        a(f"v_mov_b32 v{T0+1}, s{sA}")
        a(f"v_cndmask_b32 v{KB[j]+5}, v{T0+1}, v{T0}, s[{sLo}:{sLo+1}]")
    a.label("K2_B_VALID")
    a.wait_vm("KB")
    def cmask(j): return MF if j == 0 else (MD if j == 8 else "0")
    mx = [T0, T0 + 1]
    mfma16(a, S_[0], KB[0], QB, cmask(0))
    mfma8(a, S_[0], KB[0] + 4, QB + 4, S_[0])
    for j in range(9):
        s = S_[j % 2]; sn = S_[(j + 1) % 2]
        if j + 1 < 9:
            mfma16(a, sn, KB[j+1], QB, cmask(j + 1))
            mfma8(a, sn, KB[j+1] + 4, QB + 4, sn)
            a.nop(10 if j == 0 else 2)
        else:
            a.nop(4)
        for r in range(0, 16, 4):
            if j == 0 and r == 0:
                a(f"v_max_f32 v{mx[0]}, v{s}, v{s+1}")
                a(f"v_max_f32 v{mx[1]}, v{s+2}, v{s+3}")
            else:
                a(f"v_max3_f32 v{mx[0]}, v{mx[0]}, v{s+r}, v{s+r+1}")
                a(f"v_max3_f32 v{mx[1]}, v{mx[1]}, v{s+r+2}, v{s+r+3}")
    a(f"v_max_f32 v{T0}, v{mx[0]}, v{mx[1]}")
    a(f"v_mov_b32 v{T0+1}, v{T0}")
    a.nop(2)
    a(f"v_permlane32_swap_b32 v{T0}, v{T0+1}")
    a(f"v_max_f32 v{T0}, v{T0}, v{T0+1}")
    split_neg_max(a, T0, QB + 5, T0 + 2)
    a.nop(2)
    VBR = [16, 24]
    a(f"v_and_b32 v{T0+4}, 31, v0")
    a(f"v_lshrrev_b32 v{T0+5}, 5, v0")
    a(f"v_mul_u32_u24 v{T0+5}, 304, v{T0+5}")
    a(f"v_lshl_add_u32 v{T0+4}, v{T0+4}, 4, v{T0+5}")
    def read_vb(j):
        b_tile_index(a, j)
        a(f"s_sub_u32 s{sA}, s{sA}, s{sVt0}")
        a(f"s_mul_i32 s{sA}, s{sA}, 1216")
        a(f"s_add_u32 s{sA}, s{sA}, {VBL}")
        a(f"v_add_u32 v{T0+5}, s{sA}, v{T0+4}")
        a(f"ds_read_b128 {vr(VBR[j%2],4)}, v{T0+5}")
        a(f"ds_read_b128 {vr(VBR[j%2]+4,4)}, v{T0+5} offset:608")
    read_vb(0)
    mfma16(a, S_[0], KB[0], QB, cmask(0))
    mfma8(a, S_[0], KB[0] + 4, QB + 4, S_[0])
    a.nop(12)
    for j in range(9):
        s = S_[j % 2]; sn = S_[(j + 1) % 2]
        if j + 1 < 9:
            mfma16(a, sn, KB[j+1], QB, cmask(j + 1))
        exps(a, s, 0)
        if j + 1 < 9:
            mfma8(a, sn, KB[j+1] + 4, QB + 4, sn)
        exps(a, s, 4)
        if j > 0:
            mfma16(a, OB, VBR[(j-1)%2] + 4, P_ + 4, OB)
        exps(a, s, 8)
        a("s_waitcnt lgkmcnt(0)")
        mfma16(a, OB, VBR[j%2], P_, "0" if j == 0 else OB)
        if j + 1 < 9: read_vb(j + 1)
        exps(a, s, 12)
    a.nop(2)
    mfma16(a, OB, VBR[0] + 4, P_ + 4, OB)
    a.nop(12)
    normalize_store(a, OB, sOB, "OB", check=False)
    a("s_waitcnt lgkmcnt(0)")
    a("s_barrier")
    a(f"v_mov_b32 v{T0}, 49152")
    a(f"ds_read_b128 {vr(T0+1+0,4) if False else 'v[12:15]'}, v{T0}")
    a("s_waitcnt lgkmcnt(0)")
    a("v_or_b32 v12, v12, v13")
    a("v_or3_b32 v12, v12, v14, v15")
    a("s_nop 0")
    a(f"v_readfirstlane_b32 s{sA}, v12")
    a("s_nop 3")
    a(f"s_cmp_eq_u32 s{sA}, 0")
    a("s_cbranch_scc1 K2_FIN")
    a("s_waitcnt vmcnt(0)")
    a(f"s_mov_b32 s{sPass}, 1")
    for st in ST:
        a(f"v_mov_b32 v{st+5}, 0x3f803f80")
    for i in range(4):
        a(f"v_mov_b32 v{QA[i]+5}, 0")
        a(f"buffer_load_dwordx4 {vr(QA[i],4)}, v{vKm}, s[8:11], s{sQm} offen offset:{i*1024}")
        a(f"buffer_load_dword v{QA[i]+4}, v{vQr}, s[8:11], s{sQr} offen offset:{i*128}")
    mxs = [T0, T0 + 1, T0 + 2, T0 + 3]
    for i in range(4):
        a(f"v_mov_b32 v{mxs[i]}, 0xff7fffff")
    a(f"s_mov_b32 s{sA}, s{sKm[0]}")
    a(f"s_mov_b32 s{sB}, s{sKr}")
    a(f"s_mov_b32 s{sCmp}, 16")
    a.label("K2_FB_LOOP")
    a(f"buffer_load_dwordx4 {vr(ST[0],4)}, v{vKm}, s[8:11], s{sA} offen")
    a(f"buffer_load_dword v{ST[0]+4}, v{vKr}, s[8:11], s{sB} offen")
    a("s_waitcnt vmcnt(0)")
    for i in range(4):
        mfma16(a, S_[0], ST[0], QA[i], "0")
        mfma8(a, S_[0], ST[0] + 4, QA[i] + 4, S_[0])
        a.nop(12)
        for r in range(0, 16, 2):
            a(f"v_max3_f32 v{mxs[i]}, v{mxs[i]}, v{S_[0]+r}, v{S_[0]+r+1}")
    a(f"s_add_u32 s{sA}, s{sA}, 1024")
    a(f"s_add_u32 s{sB}, s{sB}, 128")
    a(f"s_sub_u32 s{sCmp}, s{sCmp}, 1")
    a(f"s_cmp_lg_u32 s{sCmp}, 0")
    a("s_cbranch_scc1 K2_FB_LOOP")
    for i in range(4):
        a(f"v_mov_b32 v{T0+4}, v{mxs[i]}")
        a.nop(2)
        a(f"v_permlane32_swap_b32 v{mxs[i]}, v{T0+4}")
        a(f"v_max_f32 v{mxs[i]}, v{mxs[i]}, v{T0+4}")
    a(f"s_lshl_b32 s{sA}, s{sW}, 10")
    a(f"v_add_u32 v{T0+4}, s{sA}, v{vKm}")
    a(f"v_mov_b32 v{S_[0]}, v{mxs[0]}")
    a(f"v_mov_b32 v{S_[0]+1}, v{mxs[1]}")
    a(f"v_mov_b32 v{S_[0]+2}, v{mxs[2]}")
    a(f"v_mov_b32 v{S_[0]+3}, v{mxs[3]}")
    a(f"ds_write_b128 v{T0+4}, {vr(S_[0],4)}")
    a("s_waitcnt lgkmcnt(0)")
    a("s_barrier")
    for ww in range(4):
        a(f"ds_read_b128 {vr(S_[1]+4*ww,4)}, v{vKm} offset:{ww*1024}")
    a("s_waitcnt lgkmcnt(0)")
    for i in range(4):
        a(f"v_max3_f32 v{mxs[i]}, v{S_[1]+i}, v{S_[1]+4+i}, v{S_[1]+8+i}")
        a(f"v_max_f32 v{mxs[i]}, v{mxs[i]}, v{S_[1]+12+i}")
    for i in range(4):
        split_neg_max(a, mxs[i], QA[i] + 5, T0 + 4)
    a("s_barrier")
    a("s_branch K2_A_START")
    a.label("K2_FIN")
    if diag: diag_end(a, 1, sW, 4, 16)
    a.label("K2_END")
    a("s_endpgm")
    return a.text()

K2_DESC = """
.amdhsa_kernel {name}
  .amdhsa_next_free_vgpr 248
  .amdhsa_next_free_sgpr 102
  .amdhsa_accum_offset 248
  .amdhsa_group_segment_fixed_size 0
  .amdhsa_kernarg_size 72
  .amdhsa_user_sgpr_count 2
  .amdhsa_user_sgpr_kernarg_segment_ptr 1
  .amdhsa_system_sgpr_workgroup_id_x 1
  .amdhsa_float_denorm_mode_32 3
.end_amdhsa_kernel
"""
K2_LAUNCH = f"grid=(512,1,1) block=(256,1,1) lds={VBL + 16384}"
```

```python
from asm import *
from layout import *

import os
STB = os.environ.get('K2ST', 'sc1')
NEG = 0xF149F2CA
vKm, vKr, vV, vQr, vO, vO3, vLW, vLR = 1, 2, 3, 4, 5, 6, 7, 8
T0 = 9
O_ = [16, 32, 48, 64]
S_ = [80, 96]
P_ = 112
QA = [120, 126, 132, 138]
ST = [144, 158, 172]
QB = 186
KB = [192 + 6 * i for i in range(9)]
VB = [16 + 8 * i for i in range(8)] + [120]
OB = 128
R_ = 144
TA, TB = 156, 168
MD, MF = 144, 160
sSRD = 8
sHead, sG, sW, sPass = 12, 13, 14, 15
sKm = [16, 17, 18, 19]; sKr = 20; sV = [21, 22, 23, 24, 25, 26]
sQm, sQr, sOA, sOB = 27, 28, 29, 30
sT8, sKmB, sKrB, sVB, sQmB, sQrB = 31, 32, 33, 34, 35, 36
sA, sB = 37, 38
sLo = 72
sFail = 39
sVt0, sVG, sVL = 74, 75, 76
VBL = 49280
sCmp = 40

def mfma16(a, d, x, y, c):
    a(f"v_mfma_f32_32x32x16_bf16 {vr(d,16)}, {vr(x,4)}, {vr(y,4)}, {c if isinstance(c,str) else vr(c,16)}")
def mfma8(a, d, x, y, c):
    a(f"v_mfma_f32_32x32x8_bf16 {vr(d,16)}, {vr(x,2)}, {vr(y,2)}, {vr(c,16)}")

def load_k(a, kt, tag):
    st = ST[kt % 3]
    a.vmem(f"buffer_load_dwordx4 {vr(st,4)}, v{vKm}, s[8:11], s{sKm[kt//4]} offen offset:{(kt%4)*1024}", tag)
    a.vmem(f"buffer_load_dword v{st+4}, v{vKr}, s[8:11], s{sKr} offen offset:{kt*128}", tag)
def load_v(a, kt, tag):
    st = ST[kt % 3]
    o = (kt % 3) * 1216
    a.vmem(f"buffer_load_dwordx4 {vr(st+6,4)}, v{vV}, s[8:11], s{sV[kt//3]} offen offset:{o}", tag)
    a.vmem(f"buffer_load_dwordx4 {vr(st+10,4)}, v{vV}, s[8:11], s{sV[kt//3]} offen offset:{o+608}", tag)

def exps(a, s, lo):
    for r in range(lo, lo + 4):
        a(f"v_exp_f32 v{s+r}, v{s+r}")
    a(f"v_cvt_pk_bf16_f32 v{P_+lo//2}, v{s+lo}, v{s+lo+1}")
    a(f"v_cvt_pk_bf16_f32 v{P_+lo//2+1}, v{s+lo+2}, v{s+lo+3}")

def b_tile_index(a, i):
    a(f"s_add_i32 s{sA}, s{sT8}, {i}")
    a(f"s_max_i32 s{sA}, s{sA}, 0")

def normalize_store(a, R, sO, tag, check):
    a(f"v_mov_b32 v{T0}, v{R+10}")
    a(f"v_mov_b32 v{T0+1}, v{R+10}")
    a.nop(2)
    a(f"v_permlane32_swap_b32 v{T0}, v{T0+1}")
    if check:
        a(f"v_add_f32 v{T0+2}, |v{R}|, |v{R+1}|")
        for r in range(2, 10):
            a(f"v_add_f32 v{T0+2}, v{T0+2}, |v{R+r}|")
        a(f"s_mov_b32 s{sA}, 0x1f800000")
        a(f"s_mov_b32 s{sB}, 0x5f800000")
        a(f"v_cmp_le_f32 s[78:79], s{sA}, v{T0}")
        a(f"v_cmp_ge_f32 s[80:81], s{sB}, v{T0}")
        a(f"s_mov_b32 s{sA}, 0x7e800000")
        a(f"v_cmp_gt_f32 s[6:7], s{sA}, v{T0+2}")
    a(f"v_rcp_f32 v{T0}, v{T0}")
    if check:
        a("s_nop 3")
        a("s_and_b64 s[78:79], s[78:79], s[80:81]")
        a("s_and_b64 s[78:79], s[78:79], s[6:7]")
        a("s_cmp_eq_u64 s[78:79], -1")
        a(f"s_cselect_b32 s{sFail}, 0, 1")
    else:
        a.nop(1)
    for r in range(10):
        a(f"v_mul_f32 v{R+r}, v{R+r}, v{T0}")
    a(f"v_cvt_pk_bf16_f32 v{T0+1}, v{R+8}, v{R+9}")
    a(f"v_cvt_pk_bf16_f32 v{T0+3}, v{R}, v{R+1}")
    a(f"v_cvt_pk_bf16_f32 v{T0+4}, v{R+2}, v{R+3}")
    a(f"v_cvt_pk_bf16_f32 v{T0+5}, v{R+4}, v{R+5}")
    a(f"v_cvt_pk_bf16_f32 v{T0+6}, v{R+6}, v{R+7}")
    a.vmem(f"buffer_store_dword v{T0+1}, v{vO3}, s[8:11], s{sO} offen {STB}", tag)
    a.vmem(f"buffer_store_dwordx4 {vr(T0+3,4)}, v{vO}, s[8:11], s{sO} offen {STB}", tag)

def split_neg_max(a, vm, dst, tmp):
    a(f"v_sub_f32 v{tmp}, 0, v{vm}")
    a(f"v_and_b32 v{tmp+1}, 0xffff0000, v{tmp}")
    a(f"v_sub_f32 v{tmp}, v{tmp}, v{tmp+1}")
    a(f"v_cvt_pk_bf16_f32 v{tmp}, v{tmp+1}, v{tmp}")
    a(f"v_cndmask_b32 v{dst}, v{dst}, v{tmp}, s[{sLo}:{sLo+1}]")

LADDER = {int(x.split(':')[0]): int(x.split(':')[1]) for x in os.environ.get('K2LAD', '0:3,30:2,50:1,60:0').split(',') if x}
TAILP = os.environ.get('K2TAILP', '')
PKV, PKR, PKD = 246, 234, 242
PKS, PKO = 48, 52
def pack_setup(a):
    u, q, nt, c, ng, x = 62, 63, 64, 65, 66, 67
    a("s_load_dwordx2 s[48:49], s[0:1], 16")
    a("s_load_dwordx2 s[50:51], s[0:1], 40")
    a(f"s_lshl_b32 s{u}, s2, 2")
    a(f"s_add_u32 s{u}, s{u}, s{sW}")
    a(f"s_mul_i32 s{q}, s{u}, 52429")
    a(f"s_lshr_b32 s{q}, s{q}, 18")
    a(f"s_mul_i32 s{nt}, s{q}, 5")
    a(f"s_sub_u32 s{nt}, s{u}, s{nt}")
    a(f"s_mul_i32 s{ng}, s{q}, 3641")
    a(f"s_lshr_b32 s{ng}, s{ng}, 16")
    a(f"s_mul_i32 s{c}, s{ng}, 18")
    a(f"s_sub_u32 s{c}, s{q}, s{c}")
    if WP_CH == 5120:
        a(f"s_lshl_b32 s{PKO+8}, s{u}, 10")
    else:
        a(f"s_mul_i32 s{PKO+8}, s{q}, {WP_CH}")
        a(f"s_lshl_b32 s{x}, s{nt}, 10")
        a(f"s_add_u32 s{PKO+8}, s{PKO+8}, s{x}")
    a(f"s_add_u32 s{PKO+8}, s{PKO+8}, {WP_OFF}")
    t = T0
    a(f"v_and_b32 v{t}, 15, v0")
    a(f"v_lshrrev_b32 v{t+1}, 4, v0")
    a(f"s_lshl_b32 s{x}, s{nt}, 4")
    a(f"v_add_u32 v{t}, s{x}, v{t}")
    a(f"v_cmp_gt_u32 vcc, 72, v{t}")
    a(f"s_and_b32 s{x}, s{ng}, 7")
    a(f"s_mul_i32 s{x}, s{x}, 144")
    a(f"v_lshl_add_u32 v{t}, v{t}, 1, s{x}")
    a(f"v_lshrrev_b32 v{t+2}, 1, v{t+1}")
    a(f"v_mul_u32_u24 v{t+2}, 18, v{t+2}")
    a(f"v_and_b32 v{t+3}, 1, v{t+1}")
    a(f"v_lshl_add_u32 v{t+2}, v{t+3}, 2, v{t+2}")
    a(f"v_mul_u32_u24 v{t+3}, 72, v{t+1}")
    a(f"s_cmp_lt_u32 s{c}, 16")
    a(f"s_cselect_b64 s[68:69], -1, 0")
    a(f"v_cndmask_b32 v{t+2}, v{t+3}, v{t+2}, s[68:69]")
    a(f"s_mul_i32 s{x}, s{c}, 36")
    a(f"s_sub_u32 s{q}, s{c}, 16")
    a(f"s_mul_i32 s{q}, s{q}, 288")
    a(f"s_add_u32 s{q}, s{q}, 16")
    a(f"s_cmp_lt_u32 s{c}, 16")
    a(f"s_cselect_b32 s{x}, s{x}, s{q}")
    a(f"v_add_u32 v{t+2}, s{x}, v{t+2}")
    a(f"v_mul_u32_u24 v{t+2}, 1152, v{t+2}")
    a(f"v_add_u32 v{t}, v{t}, v{t+2}")
    a(f"v_bfrev_b32 v{t+1}, 1")
    a(f"s_cmp_lt_u32 s{u}, {WP_UNITS}")
    a(f"s_cselect_b64 s[70:71], -1, 0")
    a(f"s_and_b64 vcc, vcc, s[70:71]")
    if WP_CH == 5120:
        a(f"v_lshlrev_b32 v{t+2}, 4, v0")
        a(f"v_cndmask_b32 v{PKV}, v{t+1}, v{t}, vcc")
        a(f"v_cndmask_b32 v{PKV+1}, v{t+1}, v{t+2}, s[70:71]")
    else:
        a(f"s_cmp_eq_u32 s{nt}, 4")
        a(f"s_cselect_b32 s{x}, 7, 8")
        a(f"v_lshrrev_b32 v{t+2}, 4, v0")
        a(f"v_lshlrev_b32 v{t+2}, s{x}, v{t+2}")
        a(f"v_and_b32 v{t+3}, 15, v0")
        a(f"v_lshl_add_u32 v{t+2}, v{t+3}, 4, v{t+2}")
        a(f"v_cndmask_b32 v{PKV}, v{t+1}, v{t}, vcc")
        a(f"v_cndmask_b32 v{PKV+1}, v{t+1}, v{t+2}, vcc")
    for j in range(8):
        m = ((j & 3) + 8 * (j >> 2)) * 1152
        r = ((j >> 1) * 18 + (j & 1)) * 1152
        a(f"s_mov_b32 s{x}, {r}")
        a(f"s_cmp_lt_u32 s{c}, 16")
        a(f"s_cselect_b32 s{PKO+j}, {m}, s{x}")
    a("s_waitcnt lgkmcnt(0)")
    a(f"s_cmp_ge_u32 s{ng}, 8")
    a(f"s_cselect_b32 s{PKS}, s50, s48")
    a(f"s_cselect_b32 s{PKS+1}, s51, s49")
    a(f"s_and_b32 s{PKS+1}, s{PKS+1}, 0xffff")
    a(f"s_mov_b32 s{PKS+2}, {D*D*2}")
    a(f"s_mov_b32 s{PKS+3}, 0x00020000")

def gen_k2(name="attn_kernel", diag=False):
    a = Asm()
    a(f".p2align 8\n.type {name},@function")
    a.label(name)
    a("s_cmp_ge_u32 s2, 512")
    a("s_cbranch_scc1 K2_END")
    if diag: diag_start(a)
    a("s_load_dwordx2 s[4:5], s[0:1], 64")
    a("v_lshrrev_b32 v9, 6, v0")
    a("v_and_b32 v0, 63, v0")
    a(f"v_readfirstlane_b32 s{sW}, v9")
    a("s_and_b32 s3, s2, 7")
    a("s_lshl_b32 s3, s3, 2")
    a(f"s_bfe_u32 s{sHead}, s2, 0x20003")
    a(f"s_or_b32 s{sHead}, s{sHead}, s3")
    a(f"s_lshr_b32 s{sG}, s2, 5")
    a(f"s_mov_b32 s{sPass}, 0")
    a(f"s_mov_b32 s{sLo}, -1")
    a(f"s_mov_b32 s{sLo+1}, 0")
    a(f"s_lshl_b32 s{sA}, s{sHead}, 16")
    a(f"s_lshl_b32 s{sB}, s{sW}, 14")
    a(f"s_add_u32 s{sKm[0]}, s{sA}, s{sB}")
    a(f"s_add_u32 s{sKm[0]}, s{sKm[0]}, {KM_OFF}")
    a(f"s_lshl_b32 s{sB}, s{sG}, 12")
    a(f"s_add_u32 s{sQm}, s{sA}, s{sB}")
    a(f"s_lshl_b32 s{sA}, s{sHead}, 13")
    a(f"s_lshl_b32 s{sB}, s{sW}, 11")
    a(f"s_add_u32 s{sKr}, s{sA}, s{sB}")
    a(f"s_add_u32 s{sKr}, s{sKr}, {KR_OFF}")
    a(f"s_lshl_b32 s{sB}, s{sG}, 9")
    a(f"s_add_u32 s{sQr}, s{sA}, s{sB}")
    a(f"s_add_u32 s{sQr}, s{sQr}, {QR_OFF}")
    a(f"s_mul_i32 s{sA}, s{sHead}, {VT_HEAD}")
    a(f"s_mul_i32 s{sB}, s{sW}, {16*1216}")
    a(f"s_add_u32 s{sV[0]}, s{sA}, s{sB}")
    a(f"s_add_u32 s{sV[0]}, s{sV[0]}, {VT_OFF}")
    a(f"v_lshlrev_b32 v{vKm}, 4, v0")
    a(f"v_and_b32 v9, 31, v0")
    a(f"v_lshlrev_b32 v{vKr}, 2, v9")
    a(f"v_lshrrev_b32 v10, 5, v0")
    a(f"v_bfrev_b32 v11, 1")
    a(f"v_cmp_gt_u32 s[40:41], 32, v0")
    a(f"v_mul_u32_u24 v12, 304, v10")
    a(f"v_cmp_gt_u32 vcc, 19, v9")
    a(f"v_lshl_add_u32 v12, v9, 4, v12")
    a(f"v_cndmask_b32 v{vQr}, v11, v{vKr}, s[40:41]")
    a(f"v_cndmask_b32 v{vV}, v11, v12, vcc")
    a("s_waitcnt lgkmcnt(0)")
    a("s_mov_b32 s8, s4")
    a("s_and_b32 s9, s5, 0xffff")
    a(f"s_mov_b32 s10, {WS_USED}")
    a("s_mov_b32 s11, 0x00020000")
    for q in QA:
        a(f"v_mov_b32 v{q+5}, 0")
    a.label("K2_A_START")
    def load_q(i):
        a.vmem(f"buffer_load_dwordx4 {vr(QA[i],4)}, v{vKm}, s[8:11], s{sQm} offen offset:{i*1024}", f"QA{i}")
        a.vmem(f"buffer_load_dword v{QA[i]+4}, v{vQr}, s[8:11], s{sQr} offen offset:{i*128}", f"QA{i}")
    load_k(a, 0, "K0"); load_q(0); load_q(1); load_v(a, 0, "V0"); load_q(2); load_q(3)
    for st in ST:
        a(f"v_mov_b32 v{st+5}, 0x3f803f80")
    a(f"v_and_b32 v9, 31, v0")
    a(f"v_lshrrev_b32 v10, 5, v0")
    a(f"v_bfrev_b32 v11, 1")
    a(f"v_cmp_gt_u32 s[40:41], 32, v0")
    a(f"v_lshrrev_b32 v13, 4, v9")
    a(f"v_mul_u32_u24 v13, {O_BLK}, v13")
    a(f"v_and_b32 v14, 15, v9")
    a(f"v_lshl_add_u32 v13, v14, 4, v13")
    a(f"v_lshl_add_u32 v{vO}, v10, 8, v13")
    a(f"s_lshr_b32 s{sA}, s{sHead}, 2")
    a(f"s_lshl_b32 s{sA}, s{sA}, 8")
    a(f"s_and_b32 s{sB}, s{sHead}, 3")
    a(f"s_lshl_b32 s{sB}, s{sB}, 2")
    a(f"s_add_u32 s{sA}, s{sA}, s{sB}")
    a(f"s_lshl_b32 s{sB}, s{sHead}, 9")
    a(f"s_sub_u32 s{sA}, s{sA}, s{sB}")
    a(f"s_add_u32 s{sA}, s{sA}, {16*1024}")
    a(f"v_add_u32 v13, s{sA}, v13")
    a(f"v_cndmask_b32 v{vO3}, v11, v13, s[40:41]")
    for j in range(1, 4):
        a(f"s_add_u32 s{sKm[j]}, s{sKm[0]}, {4096*j}")
    a(f"s_lshl_b32 s{sA}, s{sHead}, 16")
    a(f"s_add_u32 s{sKmB}, s{sA}, {KM_OFF + M_BR}")
    a(f"s_lshl_b32 s{sB}, s{sW}, 10")
    a(f"s_add_u32 s{sQmB}, s{sQm}, s{sB}")
    a(f"s_add_u32 s{sQmB}, s{sQmB}, {QM_OFF + M_BR}")
    a(f"s_lshl_b32 s{sA}, s{sHead}, 13")
    a(f"s_add_u32 s{sKrB}, s{sA}, {KR_OFF + R_BR}")
    a(f"s_lshl_b32 s{sB}, s{sW}, 7")
    a(f"s_add_u32 s{sQrB}, s{sQr}, s{sB}")
    a(f"s_add_u32 s{sQrB}, s{sQrB}, {R_BR}")
    a(f"s_mul_i32 s{sA}, s{sHead}, {VT_HEAD}")
    a(f"s_add_u32 s{sVB}, s{sA}, {VT_OFF + VT_BR}")
    for j in range(1, 6):
        a(f"s_add_u32 s{sV[j]}, s{sV[0]}, {3648*j}")
    a(f"s_lshl_b32 s{sA}, s{sG}, 2")
    a(f"s_add_u32 s{sA}, s{sA}, s{sW}")
    a(f"s_sub_i32 s{sT8}, s{sA}, 8")
    a(f"s_mul_i32 s{sA}, s{sA}, {2*O_BLK}")
    a(f"s_lshl_b32 s{sB}, s{sHead}, 9")
    a(f"s_add_u32 s{sOA}, s{sA}, s{sB}")
    a(f"s_add_u32 s{sOA}, s{sOA}, {O_OFF}")
    a(f"s_add_u32 s{sOB}, s{sOA}, {O_BR}")
    a(f"s_lshl_b32 s{sVt0}, s{sG}, 2")
    a(f"s_sub_i32 s{sVt0}, s{sVt0}, 8")
    a(f"s_max_i32 s{sVt0}, s{sVt0}, 0")
    a(f"s_mul_i32 s{sVG}, s{sVt0}, 1216")
    a(f"s_add_u32 s{sVG}, s{sVG}, s{sVB}")
    a(f"s_lshl_b32 s{sVL}, s{sW}, 10")
    a(f"s_add_u32 s{sVG}, s{sVG}, s{sVL}")
    a(f"s_add_u32 s{sVL}, s{sVL}, {VBL}")
    a(f"s_mul_i32 s{sB}, s{sW}, 7680")
    a(f"v_add_u32 v{vLR}, s{sB}, v{vKm}")
    pack_setup(a)
    a.wait_vm("QA0")
    if diag: diag_mark(a, 0)
    mfma16(a, S_[0], ST[0], QA[0], "0")
    mfma8(a, S_[0], ST[0] + 4, QA[0] + 4, S_[0])
    a.nop(12)
    NT = 64
    for t in range(NT):
        kt, i = divmod(t, 4)
        s = S_[t % 2]; sn = S_[(t + 1) % 2]
        kn, in_ = divmod(t + 1, 4)
        if t in LADDER: a(f"s_setprio {LADDER[t]}")
        if t == 0: load_k(a, 1, "K1")
        if t == 1: load_v(a, 1, "V1")
        if t == 2: load_k(a, 2, "K2")
        if t == 3: load_v(a, 2, "V2")
        if t == 4:
            for j in range(8):
                a.vmem(f"buffer_load_ushort v{PKR+j}, v{PKV}, s[{PKS}:{PKS+3}], s{PKO+j} offen", "PK")
        if t == 17:
            a.wait_vm("PK")
            for j in range(4):
                a(f"v_lshl_or_b32 v{PKD+j}, v{PKR+2*j+1}, 16, v{PKR+2*j}")
            a.vmem(f"buffer_store_dwordx4 {vr(PKD,4)}, v{PKV+1}, s[8:11], s{PKO+8} offen {STB}", "PKS")
        if i == 3 and kt + 3 < 16:
            load_k(a, kt + 3, f"K{kt+3}")
        if i == 1 and kt >= 1 and kt + 2 < 16:
            load_v(a, kt + 2, f"V{kt+2}")
        if i == 2 and 4 <= kt <= 12:
            j = kt - 4
            b_tile_index(a, j)
            a(f"s_lshl_b32 s{sB}, s{sA}, 10")
            a(f"s_add_u32 s{sB}, s{sB}, s{sKmB}")
            a.vmem(f"buffer_load_dwordx4 {vr(KB[j],4)}, v{vKm}, s[8:11], s{sB} offen", "KB")
            a(f"s_lshl_b32 s{sB}, s{sA}, 7")
            a(f"s_add_u32 s{sB}, s{sB}, s{sKrB}")
            a.vmem(f"buffer_load_dword v{KB[j]+4}, v{vKr}, s[8:11], s{sB} offen", "KB")
        if i == 2 and kt == 13:
            a.vmem(f"buffer_load_dwordx4 {vr(QB,4)}, v{vKm}, s[8:11], s{sQmB} offen", "KB")
            a.vmem(f"buffer_load_dword v{QB+4}, v{vQr}, s[8:11], s{sQrB} offen", "KB")
        if 20 <= t < 36:
            r = t - 20
            kc = 16 * (r >> 3) + 4 * ((r >> 2) & 1) + (r & 3)
            m = sum(1 << l for l in range(64) if kc <= (l & 31) - 8 * (l >> 5))
            a(f"s_mov_b32 s{sCmp+2*r}, {m & 0xffffffff:#x}")
            a(f"s_mov_b32 s{sCmp+2*r+1}, {m >> 32:#x}")
        if t == 33:
            for q in range(4):
                a(f"s_add_u32 m0, s{sVL}, {4096*q}")
                a(f"s_add_u32 s{sA}, s{sVG}, {4096*q}")
                a.vmem(f"buffer_load_dwordx4 v{vKm}, s[8:11], s{sA} offen lds", "VBL")
        if t + 1 < NT:
            if in_ == 0:
                a.wait_vm(f"K{kn}")
            if t < 3: a.wait_vm(f"QA{t+1}")
            mfma16(a, sn, ST[kn % 3], QA[in_], "0")
        exps(a, s, 0)
        if t + 1 < NT:
            mfma8(a, sn, ST[kn % 3] + 4, QA[in_] + 4, sn)
        exps(a, s, 4)
        if t > 0:
            kp, ip = divmod(t - 1, 4)
            mfma16(a, O_[ip], ST[kp % 3] + 10, P_ + 4, O_[ip])
        exps(a, s, 8)
        if i == 0:
            a.wait_vm(f"V{kt}")
        mfma16(a, O_[i], ST[kt % 3] + 6, P_, "0" if kt == 0 else O_[i])
        exps(a, s, 12)
    if TAILP != '': a(f"s_setprio {TAILP}")
    if diag: diag_mark(a, 1)
    a.nop(2)
    mfma16(a, O_[3], ST[15 % 3] + 10, P_ + 4, O_[3])
    a.nop(12)
    MB, SL = 7680, 2560
    for w in range(4):
        if w: a.label(f"K2_CMB{w}")
        if w < 3:
            a(f"s_cmp_lg_u32 s{sW}, {w}")
            a(f"s_cbranch_scc1 K2_CMB{w+1}")
        for i in range(4):
            if i == w: continue
            o = i * MB + (w if w < i else w - 1) * SL
            for q in range(2):
                a(f"ds_write_b128 v{vKm}, {vr(O_[i]+4*q,4)} offset:{o + q*1024}")
        a(f"s_mov_b64 exec, s[{sLo}:{sLo+1}]")
        for i in range(4):
            if i == w: continue
            o = i * MB + (w if w < i else w - 1) * SL
            a(f"ds_write_b128 v{vKm}, {vr(O_[i]+8,4)} offset:{o + 2048}")
        a("s_mov_b64 exec, -1")
        for r in range(11): a(f"v_mov_b32 v{R_+r}, v{O_[w]+r}")
        if w < 3: a("s_branch K2_CMBD")
    a.label("K2_CMBD")
    a("s_waitcnt lgkmcnt(0)")
    a("s_barrier")
    def rd(dst, slot):
        for q in range(2):
            a(f"ds_read_b128 {vr(dst+4*q,4)}, v{vLR} offset:{slot*SL + q*1024}")
    def rdh(dst, slot):
        a(f"ds_read_b128 {vr(dst+8,4)}, v{vLR} offset:{slot*SL + 2048}")
    TC = 16
    rd(TA, 0); rd(TB, 1); rd(TC, 2)
    a(f"s_mov_b64 exec, s[{sLo}:{sLo+1}]")
    rdh(TA, 0); rdh(TB, 1); rdh(TC, 2)
    a("s_mov_b64 exec, -1")
    a("s_waitcnt lgkmcnt(5)")
    for r in range(8):
        a(f"v_add_f32 v{R_+r}, v{R_+r}, v{TA+r}")
    a("s_waitcnt lgkmcnt(3)")
    for r in range(8):
        a(f"v_add_f32 v{TB+r}, v{TB+r}, v{TC+r}")
    for r in range(8):
        a(f"v_add_f32 v{R_+r}, v{R_+r}, v{TB+r}")
    a("s_waitcnt lgkmcnt(0)")
    a(f"s_mov_b64 exec, s[{sLo}:{sLo+1}]")
    for r in range(8, 11):
        a(f"v_add_f32 v{R_+r}, v{R_+r}, v{TA+r}")
        a(f"v_add_f32 v{TB+r}, v{TB+r}, v{TC+r}")
    for r in range(8, 11):
        a(f"v_add_f32 v{R_+r}, v{R_+r}, v{TB+r}")
    a("s_mov_b64 exec, -1")
    normalize_store(a, R_, sOA, "OA", check=True)
    a(f"s_cmp_lg_u32 s{sPass}, 0")
    a("s_cbranch_scc1 K2_FIN")
    a(f"v_mov_b32 v{T0}, s{sFail}")
    a(f"s_lshl_b32 s{sA}, s{sW}, 2")
    a(f"s_add_u32 s{sA}, s{sA}, 49152")
    a(f"v_mov_b32 v{T0+1}, s{sA}")
    a(f"ds_write_b32 v{T0+1}, v{T0}")
    if diag: diag_mark(a, 2)
    a(f"v_mov_b32 v{T0+1}, {NEG:#x}")
    for r in range(16):
        a(f"v_cndmask_b32 v{MD+r}, v{T0+1}, 0, s[{sCmp+2*r}:{sCmp+2*r+1}]")
    for r in range(16):
        a(f"v_xor_b32 v{MF+r}, v{T0+1}, v{MD+r}")
    a(f"v_mov_b32 v{T0}, 0x3f803f80")
    a(f"v_mov_b32 v{T0+1}, 0x3f80")
    a(f"v_cndmask_b32 v{QB+5}, v{T0+1}, 0, s[{sLo}:{sLo+1}]")
    for j in range(9):
        a(f"v_cndmask_b32 v{KB[j]+5}, 0, v{T0}, s[{sLo}:{sLo+1}]")
    a(f"s_cmp_ge_i32 s{sT8}, 0")
    a("s_cbranch_scc1 K2_B_VALID")
    for j in range(8):
        a(f"s_add_i32 s{sA}, s{sT8}, {j}")
        a(f"s_cmp_lt_i32 s{sA}, 0")
        a(f"s_cselect_b32 s{sA}, 0xf14a, 0")
        a(f"v_mov_b32 v{T0+1}, s{sA}")
        a(f"v_cndmask_b32 v{KB[j]+5}, v{T0+1}, v{T0}, s[{sLo}:{sLo+1}]")
    a.label("K2_B_VALID")
    a.wait_vm("KB")
    def cmask(j): return MF if j == 0 else (MD if j == 8 else "0")
    mx = [T0, T0 + 1]
    mfma16(a, S_[0], KB[0], QB, cmask(0))
    mfma8(a, S_[0], KB[0] + 4, QB + 4, S_[0])
    for j in range(9):
        s = S_[j % 2]; sn = S_[(j + 1) % 2]
        if j + 1 < 9:
            mfma16(a, sn, KB[j+1], QB, cmask(j + 1))
            mfma8(a, sn, KB[j+1] + 4, QB + 4, sn)
            a.nop(10 if j == 0 else 2)
        else:
            a.nop(4)
        for r in range(0, 16, 4):
            if j == 0 and r == 0:
                a(f"v_max_f32 v{mx[0]}, v{s}, v{s+1}")
                a(f"v_max_f32 v{mx[1]}, v{s+2}, v{s+3}")
            else:
                a(f"v_max3_f32 v{mx[0]}, v{mx[0]}, v{s+r}, v{s+r+1}")
                a(f"v_max3_f32 v{mx[1]}, v{mx[1]}, v{s+r+2}, v{s+r+3}")
    a(f"v_max_f32 v{T0}, v{mx[0]}, v{mx[1]}")
    a(f"v_mov_b32 v{T0+1}, v{T0}")
    a.nop(2)
    a(f"v_permlane32_swap_b32 v{T0}, v{T0+1}")
    a(f"v_max_f32 v{T0}, v{T0}, v{T0+1}")
    split_neg_max(a, T0, QB + 5, T0 + 2)
    a.nop(2)
    VBR = [16, 24]
    a(f"v_and_b32 v{T0+4}, 31, v0")
    a(f"v_lshrrev_b32 v{T0+5}, 5, v0")
    a(f"v_mul_u32_u24 v{T0+5}, 304, v{T0+5}")
    a(f"v_lshl_add_u32 v{T0+4}, v{T0+4}, 4, v{T0+5}")
    def read_vb(j):
        b_tile_index(a, j)
        a(f"s_sub_u32 s{sA}, s{sA}, s{sVt0}")
        a(f"s_mul_i32 s{sA}, s{sA}, 1216")
        a(f"s_add_u32 s{sA}, s{sA}, {VBL}")
        a(f"v_add_u32 v{T0+5}, s{sA}, v{T0+4}")
        a(f"ds_read_b128 {vr(VBR[j%2],4)}, v{T0+5}")
        a(f"ds_read_b128 {vr(VBR[j%2]+4,4)}, v{T0+5} offset:608")
    read_vb(0)
    mfma16(a, S_[0], KB[0], QB, cmask(0))
    mfma8(a, S_[0], KB[0] + 4, QB + 4, S_[0])
    a.nop(12)
    for j in range(9):
        s = S_[j % 2]; sn = S_[(j + 1) % 2]
        if j + 1 < 9:
            mfma16(a, sn, KB[j+1], QB, cmask(j + 1))
        exps(a, s, 0)
        if j + 1 < 9:
            mfma8(a, sn, KB[j+1] + 4, QB + 4, sn)
        exps(a, s, 4)
        if j > 0:
            mfma16(a, OB, VBR[(j-1)%2] + 4, P_ + 4, OB)
        exps(a, s, 8)
        a("s_waitcnt lgkmcnt(0)")
        mfma16(a, OB, VBR[j%2], P_, "0" if j == 0 else OB)
        if j + 1 < 9: read_vb(j + 1)
        exps(a, s, 12)
    a.nop(2)
    mfma16(a, OB, VBR[0] + 4, P_ + 4, OB)
    a.nop(12)
    normalize_store(a, OB, sOB, "OB", check=False)
    a("s_waitcnt lgkmcnt(0)")
    a("s_barrier")
    a(f"v_mov_b32 v{T0}, 49152")
    a(f"ds_read_b128 {vr(T0+1+0,4) if False else 'v[12:15]'}, v{T0}")
    a("s_waitcnt lgkmcnt(0)")
    a("v_or_b32 v12, v12, v13")
    a("v_or3_b32 v12, v12, v14, v15")
    a("s_nop 0")
    a(f"v_readfirstlane_b32 s{sA}, v12")
    a("s_nop 3")
    a(f"s_cmp_eq_u32 s{sA}, 0")
    a("s_cbranch_scc1 K2_FIN")
    a("s_waitcnt vmcnt(0)")
    a(f"s_mov_b32 s{sPass}, 1")
    for st in ST:
        a(f"v_mov_b32 v{st+5}, 0x3f803f80")
    for i in range(4):
        a(f"v_mov_b32 v{QA[i]+5}, 0")
        a(f"buffer_load_dwordx4 {vr(QA[i],4)}, v{vKm}, s[8:11], s{sQm} offen offset:{i*1024}")
        a(f"buffer_load_dword v{QA[i]+4}, v{vQr}, s[8:11], s{sQr} offen offset:{i*128}")
    mxs = [T0, T0 + 1, T0 + 2, T0 + 3]
    for i in range(4):
        a(f"v_mov_b32 v{mxs[i]}, 0xff7fffff")
    a(f"s_mov_b32 s{sA}, s{sKm[0]}")
    a(f"s_mov_b32 s{sB}, s{sKr}")
    a(f"s_mov_b32 s{sCmp}, 16")
    a.label("K2_FB_LOOP")
    a(f"buffer_load_dwordx4 {vr(ST[0],4)}, v{vKm}, s[8:11], s{sA} offen")
    a(f"buffer_load_dword v{ST[0]+4}, v{vKr}, s[8:11], s{sB} offen")
    a("s_waitcnt vmcnt(0)")
    for i in range(4):
        mfma16(a, S_[0], ST[0], QA[i], "0")
        mfma8(a, S_[0], ST[0] + 4, QA[i] + 4, S_[0])
        a.nop(12)
        for r in range(0, 16, 2):
            a(f"v_max3_f32 v{mxs[i]}, v{mxs[i]}, v{S_[0]+r}, v{S_[0]+r+1}")
    a(f"s_add_u32 s{sA}, s{sA}, 1024")
    a(f"s_add_u32 s{sB}, s{sB}, 128")
    a(f"s_sub_u32 s{sCmp}, s{sCmp}, 1")
    a(f"s_cmp_lg_u32 s{sCmp}, 0")
    a("s_cbranch_scc1 K2_FB_LOOP")
    for i in range(4):
        a(f"v_mov_b32 v{T0+4}, v{mxs[i]}")
        a.nop(2)
        a(f"v_permlane32_swap_b32 v{mxs[i]}, v{T0+4}")
        a(f"v_max_f32 v{mxs[i]}, v{mxs[i]}, v{T0+4}")
    a(f"s_lshl_b32 s{sA}, s{sW}, 10")
    a(f"v_add_u32 v{T0+4}, s{sA}, v{vKm}")
    a(f"v_mov_b32 v{S_[0]}, v{mxs[0]}")
    a(f"v_mov_b32 v{S_[0]+1}, v{mxs[1]}")
    a(f"v_mov_b32 v{S_[0]+2}, v{mxs[2]}")
    a(f"v_mov_b32 v{S_[0]+3}, v{mxs[3]}")
    a(f"ds_write_b128 v{T0+4}, {vr(S_[0],4)}")
    a("s_waitcnt lgkmcnt(0)")
    a("s_barrier")
    for ww in range(4):
        a(f"ds_read_b128 {vr(S_[1]+4*ww,4)}, v{vKm} offset:{ww*1024}")
    a("s_waitcnt lgkmcnt(0)")
    for i in range(4):
        a(f"v_max3_f32 v{mxs[i]}, v{S_[1]+i}, v{S_[1]+4+i}, v{S_[1]+8+i}")
        a(f"v_max_f32 v{mxs[i]}, v{mxs[i]}, v{S_[1]+12+i}")
    for i in range(4):
        split_neg_max(a, mxs[i], QA[i] + 5, T0 + 4)
    a("s_barrier")
    a("s_branch K2_A_START")
    a.label("K2_FIN")
    if diag: diag_end(a, 1, sW, 4, 16)
    a.label("K2_END")
    a("s_endpgm")
    return a.text()

K2_DESC = """
.amdhsa_kernel {name}
  .amdhsa_next_free_vgpr 248
  .amdhsa_next_free_sgpr 102
  .amdhsa_accum_offset 248
  .amdhsa_group_segment_fixed_size 0
  .amdhsa_kernarg_size 72
  .amdhsa_user_sgpr_count 2
  .amdhsa_user_sgpr_kernarg_segment_ptr 1
  .amdhsa_system_sgpr_workgroup_id_x 1
  .amdhsa_float_denorm_mode_32 3
.end_amdhsa_kernel
"""
K2_LAUNCH = f"grid=(512,1,1) block=(256,1,1) lds={VBL + 16384}"
```

```python
from asm import *
from layout import *
import os

OF = 0
ACC = 144
FW = [184, 204]
VL, VS, VS4 = 224, 225, 226
T = 228
sW, sBr, sMt, sNg = 3, 12, 13, 14
sA, sB, sC = 15, 16, 17
CH = WP_CH
NPC = 18 * CH // 1024
NQ = (NPC + 3) // 4
PD = int(os.environ.get('K3PD', '8'))
BS = int(os.environ.get('K3BS', '1'))
STB = os.environ.get('K3ST', '')

def acc(n, tt): return ACC + (n * 2 + tt) * 4

def gen_k3(name="proj_kernel", diag=False):
    a = Asm()
    a(f".p2align 8\n.type {name},@function")
    a.label(name)
    a("s_cmp_ge_u32 s2, 256")
    a("s_cbranch_scc1 K3_END")
    if diag: diag_start(a)
    a("s_load_dwordx2 s[10:11], s[0:1], 64")
    a("s_load_dwordx2 s[8:9], s[0:1], 48")
    a("v_lshrrev_b32 v1, 6, v0")
    a("v_and_b32 v0, 63, v0")
    a(f"v_readfirstlane_b32 s{sW}, v1")
    a(f"v_lshlrev_b32 v{VL}, 4, v0")
    a(f"s_bfe_u32 s{sBr}, s2, 0x10002")
    a(f"s_and_b32 s{sA}, s2, 3")
    a(f"s_lshl_b32 s{sA}, s{sA}, 2")
    a(f"s_bfe_u32 s{sMt}, s2, 0x20003")
    a(f"s_or_b32 s{sMt}, s{sMt}, s{sA}")
    a(f"s_lshr_b32 s{sNg}, s2, 5")
    sO, sOut, sWp, sM0, sT, sBlk = 30, 31, 32, 33, 34, 35
    a(f"s_lshl_b32 s{sBlk}, s{sMt}, 2")
    a(f"s_add_u32 s{sBlk}, s{sBlk}, s{sW}")
    a(f"s_mul_i32 s{sO}, s{sBlk}, {2*O_BLK}")
    a(f"s_mul_i32 s{sB}, s{sBr}, {O_BR}")
    a(f"s_add_u32 s{sO}, s{sO}, s{sB}")
    a(f"s_add_u32 s{sO}, s{sO}, {O_OFF}")
    a(f"s_lshl_b32 s{sB}, s{sBr}, 3")
    a(f"s_add_u32 s{sB}, s{sB}, s{sNg}")
    a(f"s_mul_i32 s{sWp}, s{sB}, {18*CH}")
    a(f"s_lshl_b32 s{sM0}, s{sW}, 10")
    a(f"s_add_u32 s{sWp}, s{sWp}, s{sM0}")
    a(f"s_add_u32 s{sWp}, s{sWp}, {WP_OFF}")
    sWl, sMl = 36, 37
    last = NPC - 1 - 4 * (NQ - 1)
    a(f"s_max_u32 s{sA}, s{sW}, {last}")
    a(f"s_sub_u32 s{sA}, s{sA}, {last}")
    a(f"s_lshl_b32 s{sA}, s{sA}, 10")
    a(f"s_sub_u32 s{sWl}, s{sWp}, s{sA}")
    a(f"s_sub_u32 s{sMl}, s{sM0}, s{sA}")
    a("s_waitcnt lgkmcnt(0)")
    a("s_mov_b32 s24, s10")
    a("s_and_b32 s25, s11, 0xffff")
    a(f"s_mov_b32 s26, {WS_USED}")
    a("s_mov_b32 s27, 0x00020000")
    def wslot(q):
        base, m = (sWp, sM0) if q < NQ - 1 else (sWl, sMl)
        a(f"s_add_u32 m0, s{m}, {4096*q}")
        a(f"s_add_u32 s{sT}, s{base}, {4096*q}")
        a.vmem(f"buffer_load_dwordx4 v{VL}, s[24:27], s{sT} offen lds", f"w{q}")
    def oload(c, tt):
        off = c * 1024 + tt * O_BLK
        hi, lo = off & ~4095, off & 4095
        if lo == 0 or tt == 1 or c == 0:
            a(f"s_add_u32 s{sO+10+tt}, s{sO}, {hi}")
        a.vmem(f"buffer_load_dwordx4 {vr(OF + (c*2+tt)*4, 4)}, v{VL}, s[24:27], s{sO+10+tt} offen offset:{lo}", f"o{c}")
    qmax = lambda c: min(((CH * (c + 1) - 1) // 1024) // 4, NQ - 1)
    nq = [0]
    def group(c):
        out = []
        while nq[0] <= qmax(c):
            out.append(lambda q=nq[0]: wslot(q)); nq[0] += 1
        out.append(lambda: oload(c, 0)); out.append(lambda: oload(c, 1))
        return out
    for c in range(PD):
        for f in group(c): f()
    t = T
    a(f"v_bfe_u32 v{t}, v{VL}, 4, 4")
    a(f"v_lshrrev_b32 v{t+1}, 8, v{VL}")
    a(f"v_lshrrev_b32 v{t+2}, 1, v{t+1}")
    a(f"v_and_b32 v{t+3}, 1, v{t+1}")
    a(f"v_lshl_add_u32 v{t+4}, v{t+3}, 4, v{t}")
    a(f"v_mul_u32_u24 v{t+4}, 2304, v{t+4}")
    a(f"v_lshl_add_u32 v{VS}, v{t+2}, 4, v{t+4}")
    a(f"v_bfrev_b32 v{t+5}, 1")
    a(f"v_cmp_gt_u32 vcc, 0x200, v{VL}")
    a(f"v_cndmask_b32 v{VS4}, v{t+5}, v{VS}, vcc")
    a(f"s_mul_i32 s{sOut}, s{sBlk}, {32*2304}")
    a(f"s_mul_i32 s{sB}, s{sBr}, 1152")
    a(f"s_add_u32 s{sOut}, s{sOut}, s{sB}")
    a(f"s_mul_i32 s{sB}, s{sNg}, 144")
    a(f"s_add_u32 s{sOut}, s{sOut}, s{sB}")
    a("s_mov_b32 s44, s8")
    a("s_and_b32 s45, s9, 0xffff")
    a(f"s_mov_b32 s46, {S*1152*2}")
    a("s_mov_b32 s47, 0x00020000")
    VH = T + 6
    def rd1(c, n):
        off = c * CH + n * 1024
        half = n == 4 and CH != 5120
        lo, hi = (VH, VH + 1) if half else (VL, VL + 3)
        if off < 65536: return f"ds_read_b128 {vr(FW[c % 2] + 4*n, 4)}, v{lo} offset:{off}"
        return f"ds_read_b128 {vr(FW[c % 2] + 4*n, 4)}, v{hi} offset:{off - 61440}"
    def reads(c):
        return [rd1(c, n) for n in range(5)]
    a(f"v_add_u32 v{VL+3}, 61440, v{VL}")
    if CH != 5120:
        a(f"v_and_b32 v{VH}, 0x70, v{VL}")
        a(f"v_lshrrev_b32 v{VH+1}, 8, v{VL}")
        a(f"v_lshl_add_u32 v{VH}, v{VH+1}, 7, v{VH}")
        a(f"v_add_u32 v{VH+1}, 61440, v{VH}")
    def landed(c):
        a.wait_vm(f"w{qmax(c)}")
    landed(min(BS - 1, 17))
    a("s_barrier")
    if diag: diag_mark(a, 0)
    for r in reads(0): a(r)
    for c in range(18):
        pend = group(c + PD) if c + PD < 18 else []
        a.wait_vm(f"o{c}", "lgkmcnt(0)")
        if c + 1 < 18 and (c + 1) % BS == 0:
            landed(min(c + BS, 17))
            a("s_barrier")
        rd = reads(c + 1) if c + 1 < 18 else []
        k = 0
        for n in range(5):
            for tt in range(2):
                cc = "0" if c == 0 else vr(acc(n, tt), 4)
                a(f"v_mfma_f32_16x16x32_bf16 {vr(acc(n,tt),4)}, {vr(FW[c%2]+4*n,4)}, {vr(OF+(c*2+tt)*4,4)}, {cc}")
                if k < len(rd): a(rd[k]); k += 1
                if pend and (n * 2 + tt) % 2 == 1: pend.pop(0)()
        while pend: pend.pop(0)()
    if diag: diag_mark(a, 1)
    a.nop(8)
    for n in range(5):
        d = T + 4 * (n % 3)
        A = acc(n, 0); B = acc(n, 1)
        a(f"v_cvt_pk_bf16_f32 v{d}, v{A}, v{A+1}")
        a(f"v_cvt_pk_bf16_f32 v{d+1}, v{A+2}, v{A+3}")
        a(f"v_cvt_pk_bf16_f32 v{d+2}, v{B}, v{B+1}")
        a(f"v_cvt_pk_bf16_f32 v{d+3}, v{B+2}, v{B+3}")
        a.nop(2)
        a(f"v_permlane16_swap_b32 v{d}, v{d+2}")
        a(f"v_permlane16_swap_b32 v{d+1}, v{d+3}")
        a(f"buffer_store_dwordx4 {vr(d,4)}, v{VS if n < 4 else VS4}, s[44:47], s{sOut} offen offset:{n*32} {STB}")
    if diag:
        diag_mark(a, 2)
        a("s_waitcnt vmcnt(0)")
        a("s_mov_b32 s4, s24"); a("s_mov_b32 s5, s25")
        diag_end(a, 2, sW, 4, 16)
    a.label("K3_END")
    a("s_endpgm")
    return a.text()

K3_DESC = """
.amdhsa_kernel {name}
  .amdhsa_next_free_vgpr 240
  .amdhsa_next_free_sgpr 102
  .amdhsa_accum_offset 240
  .amdhsa_group_segment_fixed_size 0
  .amdhsa_kernarg_size 72
  .amdhsa_user_sgpr_count 2
  .amdhsa_user_sgpr_kernarg_segment_ptr 1
  .amdhsa_system_sgpr_workgroup_id_x 1
  .amdhsa_float_denorm_mode_32 3
.end_amdhsa_kernel
"""
K3_LAUNCH = f"grid=(256,1,1) block=(256,1,1) lds={18*CH}"
```

```python
from asm import *
from layout import *

import os
STB = os.environ.get('K2ST', 'sc1')
STR = os.environ.get('K2STR', 'sc1')
STW = os.environ.get('K2STW', 'sc1')
NEG = 0xF149F2CA
vKm, vKr, vV, vQr, vO, vO3, vLW, vLR = 1, 2, 3, 4, 5, 6, 7, 8
T0 = 9
O_ = [16, 32, 48, 64]
S_ = [80, 96]
P_ = 112
QA = [120, 126, 132, 138]
ST = [144, 158, 172]
QB = 186
KB = [192 + 6 * i for i in range(9)]
VB = [16 + 8 * i for i in range(8)] + [120]
OB = 128
R_ = 144
TA, TB = 156, 168
MD, MF = 144, 160
sSRD = 8
sHead, sG, sW, sPass = 12, 13, 14, 15
sKm = [16, 17, 18, 19]; sKr = 20; sV = [21, 22, 23, 24, 25, 26]
sQm, sQr, sOA, sOB = 27, 28, 29, 30
sT8, sKmB, sKrB, sVB, sQmB, sQrB = 31, 32, 33, 34, 35, 36
sA, sB = 37, 38
sLo = 72
sFail = 39
sVt0, sVG, sVL = 74, 75, 76
VBL = 49280
sCmp = 40

def mfma16(a, d, x, y, c):
    a(f"v_mfma_f32_32x32x16_bf16 {vr(d,16)}, {vr(x,4)}, {vr(y,4)}, {c if isinstance(c,str) else vr(c,16)}")
def mfma8(a, d, x, y, c):
    a(f"v_mfma_f32_32x32x8_bf16 {vr(d,16)}, {vr(x,2)}, {vr(y,2)}, {vr(c,16)}")

def load_k(a, kt, tag):
    st = ST[kt % 3]
    a.vmem(f"buffer_load_dwordx4 {vr(st,4)}, v{vKm}, s[8:11], s{sKm[kt//4]} offen offset:{(kt%4)*1024}", tag)
    a.vmem(f"buffer_load_dword v{st+4}, v{vKr}, s[8:11], s{sKr} offen offset:{kt*128}", tag)
def load_v(a, kt, tag):
    st = ST[kt % 3]
    o = (kt % 3) * 1216
    a.vmem(f"buffer_load_dwordx4 {vr(st+6,4)}, v{vV}, s[8:11], s{sV[kt//3]} offen offset:{o}", tag)
    a.vmem(f"buffer_load_dwordx4 {vr(st+10,4)}, v{vV}, s[8:11], s{sV[kt//3]} offen offset:{o+608}", tag)

def exps(a, s, lo):
    for r in range(lo, lo + 4):
        a(f"v_exp_f32 v{s+r}, v{s+r}")
    a(f"v_cvt_pk_bf16_f32 v{P_+lo//2}, v{s+lo}, v{s+lo+1}")
    a(f"v_cvt_pk_bf16_f32 v{P_+lo//2+1}, v{s+lo+2}, v{s+lo+3}")

def b_tile_index(a, i):
    a(f"s_add_i32 s{sA}, s{sT8}, {i}")
    a(f"s_max_i32 s{sA}, s{sA}, 0")

def normalize_store(a, R, sO, tag, check):
    a(f"v_mov_b32 v{T0}, v{R+10}")
    a(f"v_mov_b32 v{T0+1}, v{R+10}")
    a.nop(2)
    a(f"v_permlane32_swap_b32 v{T0}, v{T0+1}")
    if check:
        a(f"v_add_f32 v{T0+2}, |v{R}|, |v{R+1}|")
        for r in range(2, 10):
            a(f"v_add_f32 v{T0+2}, v{T0+2}, |v{R+r}|")
        a(f"s_mov_b32 s{sA}, 0x1f800000")
        a(f"s_mov_b32 s{sB}, 0x5f800000")
        a(f"v_cmp_le_f32 s[78:79], s{sA}, v{T0}")
        a(f"v_cmp_ge_f32 s[80:81], s{sB}, v{T0}")
        a(f"s_mov_b32 s{sA}, 0x7e800000")
        a(f"v_cmp_gt_f32 s[6:7], s{sA}, v{T0+2}")
    a(f"v_rcp_f32 v{T0}, v{T0}")
    if check:
        a("s_nop 3")
        a("s_and_b64 s[78:79], s[78:79], s[80:81]")
        a("s_and_b64 s[78:79], s[78:79], s[6:7]")
        a("s_cmp_eq_u64 s[78:79], -1")
        a(f"s_cselect_b32 s{sFail}, 0, 1")
    else:
        a.nop(1)
    for r in range(10):
        a(f"v_mul_f32 v{R+r}, v{R+r}, v{T0}")
    a(f"v_cvt_pk_bf16_f32 v{T0+1}, v{R+8}, v{R+9}")
    a(f"v_cvt_pk_bf16_f32 v{T0+3}, v{R}, v{R+1}")
    a(f"v_cvt_pk_bf16_f32 v{T0+4}, v{R+2}, v{R+3}")
    a(f"v_cvt_pk_bf16_f32 v{T0+5}, v{R+4}, v{R+5}")
    a(f"v_cvt_pk_bf16_f32 v{T0+6}, v{R+6}, v{R+7}")
    a.vmem(f"buffer_store_dword v{T0+1}, v{vO3}, s[8:11], s{sO} offen {STR}", tag)
    a.vmem(f"buffer_store_dwordx4 {vr(T0+3,4)}, v{vO}, s[8:11], s{sO} offen {STB}", tag)

def split_neg_max(a, vm, dst, tmp):
    a(f"v_sub_f32 v{tmp}, 0, v{vm}")
    a(f"v_and_b32 v{tmp+1}, 0xffff0000, v{tmp}")
    a(f"v_sub_f32 v{tmp}, v{tmp}, v{tmp+1}")
    a(f"v_cvt_pk_bf16_f32 v{tmp}, v{tmp+1}, v{tmp}")
    a(f"v_cndmask_b32 v{dst}, v{dst}, v{tmp}, s[{sLo}:{sLo+1}]")

LADDER = {int(x.split(':')[0]): int(x.split(':')[1]) for x in os.environ.get('K2LAD', '0:3,30:2,50:1,60:0').split(',') if x}
TAILP = os.environ.get('K2TAILP', '')
PKV, PKR, PKD = 246, 234, 242
PKS, PKO = 48, 52
def pack_setup(a):
    u, q, nt, c, ng, x = 62, 63, 64, 65, 66, 67
    a("s_load_dwordx2 s[48:49], s[0:1], 16")
    a("s_load_dwordx2 s[50:51], s[0:1], 40")
    a(f"s_lshl_b32 s{u}, s2, 2")
    a(f"s_add_u32 s{u}, s{u}, s{sW}")
    a(f"s_mul_i32 s{q}, s{u}, 52429")
    a(f"s_lshr_b32 s{q}, s{q}, 18")
    a(f"s_mul_i32 s{nt}, s{q}, 5")
    a(f"s_sub_u32 s{nt}, s{u}, s{nt}")
    a(f"s_mul_i32 s{ng}, s{q}, 3641")
    a(f"s_lshr_b32 s{ng}, s{ng}, 16")
    a(f"s_mul_i32 s{c}, s{ng}, 18")
    a(f"s_sub_u32 s{c}, s{q}, s{c}")
    if WP_CH == 5120:
        a(f"s_lshl_b32 s{PKO+8}, s{u}, 10")
    else:
        a(f"s_mul_i32 s{PKO+8}, s{q}, {WP_CH}")
        a(f"s_lshl_b32 s{x}, s{nt}, 10")
        a(f"s_add_u32 s{PKO+8}, s{PKO+8}, s{x}")
    a(f"s_add_u32 s{PKO+8}, s{PKO+8}, {WP_OFF}")
    t = T0
    a(f"v_and_b32 v{t}, 15, v0")
    a(f"v_lshrrev_b32 v{t+1}, 4, v0")
    a(f"s_lshl_b32 s{x}, s{nt}, 4")
    a(f"v_add_u32 v{t}, s{x}, v{t}")
    a(f"v_cmp_gt_u32 vcc, 72, v{t}")
    a(f"s_and_b32 s{x}, s{ng}, 7")
    a(f"s_mul_i32 s{x}, s{x}, 144")
    a(f"v_lshl_add_u32 v{t}, v{t}, 1, s{x}")
    a(f"v_lshrrev_b32 v{t+2}, 1, v{t+1}")
    a(f"v_mul_u32_u24 v{t+2}, 18, v{t+2}")
    a(f"v_and_b32 v{t+3}, 1, v{t+1}")
    a(f"v_lshl_add_u32 v{t+2}, v{t+3}, 2, v{t+2}")
    a(f"v_mul_u32_u24 v{t+3}, 72, v{t+1}")
    a(f"s_cmp_lt_u32 s{c}, 16")
    a(f"s_cselect_b64 s[68:69], -1, 0")
    a(f"v_cndmask_b32 v{t+2}, v{t+3}, v{t+2}, s[68:69]")
    a(f"s_mul_i32 s{x}, s{c}, 36")
    a(f"s_sub_u32 s{q}, s{c}, 16")
    a(f"s_mul_i32 s{q}, s{q}, 288")
    a(f"s_add_u32 s{q}, s{q}, 16")
    a(f"s_cmp_lt_u32 s{c}, 16")
    a(f"s_cselect_b32 s{x}, s{x}, s{q}")
    a(f"v_add_u32 v{t+2}, s{x}, v{t+2}")
    a(f"v_mul_u32_u24 v{t+2}, 1152, v{t+2}")
    a(f"v_add_u32 v{t}, v{t}, v{t+2}")
    a(f"v_bfrev_b32 v{t+1}, 1")
    a(f"s_cmp_lt_u32 s{u}, {WP_UNITS}")
    a(f"s_cselect_b64 s[70:71], -1, 0")
    a(f"s_and_b64 vcc, vcc, s[70:71]")
    if WP_CH == 5120:
        a(f"v_lshlrev_b32 v{t+2}, 4, v0")
        a(f"v_cndmask_b32 v{PKV}, v{t+1}, v{t}, vcc")
        a(f"v_cndmask_b32 v{PKV+1}, v{t+1}, v{t+2}, s[70:71]")
    else:
        a(f"s_cmp_eq_u32 s{nt}, 4")
        a(f"s_cselect_b32 s{x}, 7, 8")
        a(f"v_lshrrev_b32 v{t+2}, 4, v0")
        a(f"v_lshlrev_b32 v{t+2}, s{x}, v{t+2}")
        a(f"v_and_b32 v{t+3}, 15, v0")
        a(f"v_lshl_add_u32 v{t+2}, v{t+3}, 4, v{t+2}")
        a(f"v_cndmask_b32 v{PKV}, v{t+1}, v{t}, vcc")
        a(f"v_cndmask_b32 v{PKV+1}, v{t+1}, v{t+2}, vcc")
    for j in range(8):
        m = ((j & 3) + 8 * (j >> 2)) * 1152
        r = ((j >> 1) * 18 + (j & 1)) * 1152
        a(f"s_mov_b32 s{x}, {r}")
        a(f"s_cmp_lt_u32 s{c}, 16")
        a(f"s_cselect_b32 s{PKO+j}, {m}, s{x}")
    a("s_waitcnt lgkmcnt(0)")
    a(f"s_cmp_ge_u32 s{ng}, 8")
    a(f"s_cselect_b32 s{PKS}, s50, s48")
    a(f"s_cselect_b32 s{PKS+1}, s51, s49")
    a(f"s_and_b32 s{PKS+1}, s{PKS+1}, 0xffff")
    a(f"s_mov_b32 s{PKS+2}, {D*D*2}")
    a(f"s_mov_b32 s{PKS+3}, 0x00020000")

def gen_k2(name="attn_kernel", diag=False):
    a = Asm()
    a(f".p2align 8\n.type {name},@function")
    a.label(name)
    a("s_cmp_ge_u32 s2, 512")
    a("s_cbranch_scc1 K2_END")
    if diag: diag_start(a)
    a("s_load_dwordx2 s[4:5], s[0:1], 64")
    a("v_lshrrev_b32 v9, 6, v0")
    a("v_and_b32 v0, 63, v0")
    a(f"v_readfirstlane_b32 s{sW}, v9")
    a("s_and_b32 s3, s2, 7")
    a("s_lshl_b32 s3, s3, 2")
    a(f"s_bfe_u32 s{sHead}, s2, 0x20003")
    a(f"s_or_b32 s{sHead}, s{sHead}, s3")
    a(f"s_lshr_b32 s{sG}, s2, 5")
    a(f"s_mov_b32 s{sPass}, 0")
    a(f"s_mov_b32 s{sLo}, -1")
    a(f"s_mov_b32 s{sLo+1}, 0")
    a(f"s_lshl_b32 s{sA}, s{sHead}, 16")
    a(f"s_lshl_b32 s{sB}, s{sW}, 14")
    a(f"s_add_u32 s{sKm[0]}, s{sA}, s{sB}")
    a(f"s_add_u32 s{sKm[0]}, s{sKm[0]}, {KM_OFF}")
    a(f"s_lshl_b32 s{sB}, s{sG}, 12")
    a(f"s_add_u32 s{sQm}, s{sA}, s{sB}")
    a(f"s_lshl_b32 s{sA}, s{sHead}, 13")
    a(f"s_lshl_b32 s{sB}, s{sW}, 11")
    a(f"s_add_u32 s{sKr}, s{sA}, s{sB}")
    a(f"s_add_u32 s{sKr}, s{sKr}, {KR_OFF}")
    a(f"s_lshl_b32 s{sB}, s{sG}, 9")
    a(f"s_add_u32 s{sQr}, s{sA}, s{sB}")
    a(f"s_add_u32 s{sQr}, s{sQr}, {QR_OFF}")
    a(f"s_mul_i32 s{sA}, s{sHead}, {VT_HEAD}")
    a(f"s_mul_i32 s{sB}, s{sW}, {16*1216}")
    a(f"s_add_u32 s{sV[0]}, s{sA}, s{sB}")
    a(f"s_add_u32 s{sV[0]}, s{sV[0]}, {VT_OFF}")
    a(f"v_lshlrev_b32 v{vKm}, 4, v0")
    a(f"v_and_b32 v9, 31, v0")
    a(f"v_lshlrev_b32 v{vKr}, 2, v9")
    a(f"v_lshrrev_b32 v10, 5, v0")
    a(f"v_bfrev_b32 v11, 1")
    a(f"v_cmp_gt_u32 s[40:41], 32, v0")
    a(f"v_mul_u32_u24 v12, 304, v10")
    a(f"v_cmp_gt_u32 vcc, 19, v9")
    a(f"v_lshl_add_u32 v12, v9, 4, v12")
    a(f"v_cndmask_b32 v{vQr}, v11, v{vKr}, s[40:41]")
    a(f"v_cndmask_b32 v{vV}, v11, v12, vcc")
    a("s_waitcnt lgkmcnt(0)")
    a("s_mov_b32 s8, s4")
    a("s_and_b32 s9, s5, 0xffff")
    a(f"s_mov_b32 s10, {WS_USED}")
    a("s_mov_b32 s11, 0x00020000")
    for q in QA:
        a(f"v_mov_b32 v{q+5}, 0")
    a.label("K2_A_START")
    def load_q(i):
        a.vmem(f"buffer_load_dwordx4 {vr(QA[i],4)}, v{vKm}, s[8:11], s{sQm} offen offset:{i*1024}", f"QA{i}")
        a.vmem(f"buffer_load_dword v{QA[i]+4}, v{vQr}, s[8:11], s{sQr} offen offset:{i*128}", f"QA{i}")
    load_k(a, 0, "K0"); load_q(0); load_q(1); load_v(a, 0, "V0"); load_q(2); load_q(3)
    for st in ST:
        a(f"v_mov_b32 v{st+5}, 0x3f803f80")
    a(f"v_and_b32 v9, 31, v0")
    a(f"v_lshrrev_b32 v10, 5, v0")
    a(f"v_bfrev_b32 v11, 1")
    a(f"v_cmp_gt_u32 s[40:41], 32, v0")
    a(f"v_lshrrev_b32 v13, 4, v9")
    a(f"v_mul_u32_u24 v13, {O_BLK}, v13")
    a(f"v_and_b32 v14, 15, v9")
    a(f"v_lshl_add_u32 v13, v14, 4, v13")
    a(f"v_lshl_add_u32 v{vO}, v10, 8, v13")
    a(f"s_lshr_b32 s{sA}, s{sHead}, 2")
    a(f"s_lshl_b32 s{sA}, s{sA}, 8")
    a(f"s_and_b32 s{sB}, s{sHead}, 3")
    a(f"s_lshl_b32 s{sB}, s{sB}, 2")
    a(f"s_add_u32 s{sA}, s{sA}, s{sB}")
    a(f"s_lshl_b32 s{sB}, s{sHead}, 9")
    a(f"s_sub_u32 s{sA}, s{sA}, s{sB}")
    a(f"s_add_u32 s{sA}, s{sA}, {16*1024}")
    a(f"v_add_u32 v13, s{sA}, v13")
    a(f"v_cndmask_b32 v{vO3}, v11, v13, s[40:41]")
    for j in range(1, 4):
        a(f"s_add_u32 s{sKm[j]}, s{sKm[0]}, {4096*j}")
    a(f"s_lshl_b32 s{sA}, s{sHead}, 16")
    a(f"s_add_u32 s{sKmB}, s{sA}, {KM_OFF + M_BR}")
    a(f"s_lshl_b32 s{sB}, s{sW}, 10")
    a(f"s_add_u32 s{sQmB}, s{sQm}, s{sB}")
    a(f"s_add_u32 s{sQmB}, s{sQmB}, {QM_OFF + M_BR}")
    a(f"s_lshl_b32 s{sA}, s{sHead}, 13")
    a(f"s_add_u32 s{sKrB}, s{sA}, {KR_OFF + R_BR}")
    a(f"s_lshl_b32 s{sB}, s{sW}, 7")
    a(f"s_add_u32 s{sQrB}, s{sQr}, s{sB}")
    a(f"s_add_u32 s{sQrB}, s{sQrB}, {R_BR}")
    a(f"s_mul_i32 s{sA}, s{sHead}, {VT_HEAD}")
    a(f"s_add_u32 s{sVB}, s{sA}, {VT_OFF + VT_BR}")
    for j in range(1, 6):
        a(f"s_add_u32 s{sV[j]}, s{sV[0]}, {3648*j}")
    a(f"s_lshl_b32 s{sA}, s{sG}, 2")
    a(f"s_add_u32 s{sA}, s{sA}, s{sW}")
    a(f"s_sub_i32 s{sT8}, s{sA}, 8")
    a(f"s_mul_i32 s{sA}, s{sA}, {2*O_BLK}")
    a(f"s_lshl_b32 s{sB}, s{sHead}, 9")
    a(f"s_add_u32 s{sOA}, s{sA}, s{sB}")
    a(f"s_add_u32 s{sOA}, s{sOA}, {O_OFF}")
    a(f"s_add_u32 s{sOB}, s{sOA}, {O_BR}")
    a(f"s_lshl_b32 s{sVt0}, s{sG}, 2")
    a(f"s_sub_i32 s{sVt0}, s{sVt0}, 8")
    a(f"s_max_i32 s{sVt0}, s{sVt0}, 0")
    a(f"s_mul_i32 s{sVG}, s{sVt0}, 1216")
    a(f"s_add_u32 s{sVG}, s{sVG}, s{sVB}")
    a(f"s_lshl_b32 s{sVL}, s{sW}, 10")
    a(f"s_add_u32 s{sVG}, s{sVG}, s{sVL}")
    a(f"s_add_u32 s{sVL}, s{sVL}, {VBL}")
    a(f"s_mul_i32 s{sB}, s{sW}, 7680")
    a(f"v_add_u32 v{vLR}, s{sB}, v{vKm}")
    pack_setup(a)
    a.wait_vm("QA0")
    if diag: diag_mark(a, 0)
    mfma16(a, S_[0], ST[0], QA[0], "0")
    mfma8(a, S_[0], ST[0] + 4, QA[0] + 4, S_[0])
    a.nop(12)
    NT = 64
    for t in range(NT):
        kt, i = divmod(t, 4)
        s = S_[t % 2]; sn = S_[(t + 1) % 2]
        kn, in_ = divmod(t + 1, 4)
        if t in LADDER: a(f"s_setprio {LADDER[t]}")
        if t == 0: load_k(a, 1, "K1")
        if t == 1: load_v(a, 1, "V1")
        if t == 2: load_k(a, 2, "K2")
        if t == 3: load_v(a, 2, "V2")
        if t == 4:
            for j in range(8):
                a.vmem(f"buffer_load_ushort v{PKR+j}, v{PKV}, s[{PKS}:{PKS+3}], s{PKO+j} offen", "PK")
        if t == 17:
            a.wait_vm("PK")
            for j in range(4):
                a(f"v_lshl_or_b32 v{PKD+j}, v{PKR+2*j+1}, 16, v{PKR+2*j}")
            a.vmem(f"buffer_store_dwordx4 {vr(PKD,4)}, v{PKV+1}, s[8:11], s{PKO+8} offen {STW}", "PKS")
        if i == 3 and kt + 3 < 16:
            load_k(a, kt + 3, f"K{kt+3}")
        if i == 1 and kt >= 1 and kt + 2 < 16:
            load_v(a, kt + 2, f"V{kt+2}")
        if i == 2 and 4 <= kt <= 12:
            j = kt - 4
            b_tile_index(a, j)
            a(f"s_lshl_b32 s{sB}, s{sA}, 10")
            a(f"s_add_u32 s{sB}, s{sB}, s{sKmB}")
            a.vmem(f"buffer_load_dwordx4 {vr(KB[j],4)}, v{vKm}, s[8:11], s{sB} offen", "KB")
            a(f"s_lshl_b32 s{sB}, s{sA}, 7")
            a(f"s_add_u32 s{sB}, s{sB}, s{sKrB}")
            a.vmem(f"buffer_load_dword v{KB[j]+4}, v{vKr}, s[8:11], s{sB} offen", "KB")
        if i == 2 and kt == 13:
            a.vmem(f"buffer_load_dwordx4 {vr(QB,4)}, v{vKm}, s[8:11], s{sQmB} offen", "KB")
            a.vmem(f"buffer_load_dword v{QB+4}, v{vQr}, s[8:11], s{sQrB} offen", "KB")
        if 20 <= t < 36:
            r = t - 20
            kc = 16 * (r >> 3) + 4 * ((r >> 2) & 1) + (r & 3)
            m = sum(1 << l for l in range(64) if kc <= (l & 31) - 8 * (l >> 5))
            a(f"s_mov_b32 s{sCmp+2*r}, {m & 0xffffffff:#x}")
            a(f"s_mov_b32 s{sCmp+2*r+1}, {m >> 32:#x}")
        if t == 33:
            for q in range(4):
                a(f"s_add_u32 m0, s{sVL}, {4096*q}")
                a(f"s_add_u32 s{sA}, s{sVG}, {4096*q}")
                a.vmem(f"buffer_load_dwordx4 v{vKm}, s[8:11], s{sA} offen lds", "VBL")
        if t + 1 < NT:
            if in_ == 0:
                a.wait_vm(f"K{kn}")
            if t < 3: a.wait_vm(f"QA{t+1}")
            mfma16(a, sn, ST[kn % 3], QA[in_], "0")
        exps(a, s, 0)
        if t + 1 < NT:
            mfma8(a, sn, ST[kn % 3] + 4, QA[in_] + 4, sn)
        exps(a, s, 4)
        if t > 0:
            kp, ip = divmod(t - 1, 4)
            mfma16(a, O_[ip], ST[kp % 3] + 10, P_ + 4, O_[ip])
        exps(a, s, 8)
        if i == 0:
            a.wait_vm(f"V{kt}")
        mfma16(a, O_[i], ST[kt % 3] + 6, P_, "0" if kt == 0 else O_[i])
        exps(a, s, 12)
    if TAILP != '': a(f"s_setprio {TAILP}")
    if diag: diag_mark(a, 1)
    a.nop(2)
    mfma16(a, O_[3], ST[15 % 3] + 10, P_ + 4, O_[3])
    a.nop(12)
    MB, SL = 7680, 2560
    for w in range(4):
        if w: a.label(f"K2_CMB{w}")
        if w < 3:
            a(f"s_cmp_lg_u32 s{sW}, {w}")
            a(f"s_cbranch_scc1 K2_CMB{w+1}")
        for i in range(4):
            if i == w: continue
            o = i * MB + (w if w < i else w - 1) * SL
            for q in range(2):
                a(f"ds_write_b128 v{vKm}, {vr(O_[i]+4*q,4)} offset:{o + q*1024}")
        a(f"s_mov_b64 exec, s[{sLo}:{sLo+1}]")
        for i in range(4):
            if i == w: continue
            o = i * MB + (w if w < i else w - 1) * SL
            a(f"ds_write_b128 v{vKm}, {vr(O_[i]+8,4)} offset:{o + 2048}")
        a("s_mov_b64 exec, -1")
        for r in range(11): a(f"v_mov_b32 v{R_+r}, v{O_[w]+r}")
        if w < 3: a("s_branch K2_CMBD")
    a.label("K2_CMBD")
    a("s_waitcnt lgkmcnt(0)")
    a("s_barrier")
    def rd(dst, slot):
        for q in range(2):
            a(f"ds_read_b128 {vr(dst+4*q,4)}, v{vLR} offset:{slot*SL + q*1024}")
    def rdh(dst, slot):
        a(f"ds_read_b128 {vr(dst+8,4)}, v{vLR} offset:{slot*SL + 2048}")
    TC = 16
    rd(TA, 0); rd(TB, 1); rd(TC, 2)
    a(f"s_mov_b64 exec, s[{sLo}:{sLo+1}]")
    rdh(TA, 0); rdh(TB, 1); rdh(TC, 2)
    a("s_mov_b64 exec, -1")
    a("s_waitcnt lgkmcnt(5)")
    for r in range(8):
        a(f"v_add_f32 v{R_+r}, v{R_+r}, v{TA+r}")
    a("s_waitcnt lgkmcnt(3)")
    for r in range(8):
        a(f"v_add_f32 v{TB+r}, v{TB+r}, v{TC+r}")
    for r in range(8):
        a(f"v_add_f32 v{R_+r}, v{R_+r}, v{TB+r}")
    a("s_waitcnt lgkmcnt(0)")
    a(f"s_mov_b64 exec, s[{sLo}:{sLo+1}]")
    for r in range(8, 11):
        a(f"v_add_f32 v{R_+r}, v{R_+r}, v{TA+r}")
        a(f"v_add_f32 v{TB+r}, v{TB+r}, v{TC+r}")
    for r in range(8, 11):
        a(f"v_add_f32 v{R_+r}, v{R_+r}, v{TB+r}")
    a("s_mov_b64 exec, -1")
    normalize_store(a, R_, sOA, "OA", check=True)
    a(f"s_cmp_lg_u32 s{sPass}, 0")
    a("s_cbranch_scc1 K2_FIN")
    a(f"v_mov_b32 v{T0}, s{sFail}")
    a(f"s_lshl_b32 s{sA}, s{sW}, 2")
    a(f"s_add_u32 s{sA}, s{sA}, 49152")
    a(f"v_mov_b32 v{T0+1}, s{sA}")
    a(f"ds_write_b32 v{T0+1}, v{T0}")
    if diag: diag_mark(a, 2)
    a(f"v_mov_b32 v{T0+1}, {NEG:#x}")
    for r in range(16):
        a(f"v_cndmask_b32 v{MD+r}, v{T0+1}, 0, s[{sCmp+2*r}:{sCmp+2*r+1}]")
    for r in range(16):
        a(f"v_xor_b32 v{MF+r}, v{T0+1}, v{MD+r}")
    a(f"v_mov_b32 v{T0}, 0x3f803f80")
    a(f"v_mov_b32 v{T0+1}, 0x3f80")
    a(f"v_cndmask_b32 v{QB+5}, v{T0+1}, 0, s[{sLo}:{sLo+1}]")
    for j in range(9):
        a(f"v_cndmask_b32 v{KB[j]+5}, 0, v{T0}, s[{sLo}:{sLo+1}]")
    a(f"s_cmp_ge_i32 s{sT8}, 0")
    a("s_cbranch_scc1 K2_B_VALID")
    for j in range(8):
        a(f"s_add_i32 s{sA}, s{sT8}, {j}")
        a(f"s_cmp_lt_i32 s{sA}, 0")
        a(f"s_cselect_b32 s{sA}, 0xf14a, 0")
        a(f"v_mov_b32 v{T0+1}, s{sA}")
        a(f"v_cndmask_b32 v{KB[j]+5}, v{T0+1}, v{T0}, s[{sLo}:{sLo+1}]")
    a.label("K2_B_VALID")
    a.wait_vm("KB")
    def cmask(j): return MF if j == 0 else (MD if j == 8 else "0")
    mx = [T0, T0 + 1]
    mfma16(a, S_[0], KB[0], QB, cmask(0))
    mfma8(a, S_[0], KB[0] + 4, QB + 4, S_[0])
    for j in range(9):
        s = S_[j % 2]; sn = S_[(j + 1) % 2]
        if j + 1 < 9:
            mfma16(a, sn, KB[j+1], QB, cmask(j + 1))
            mfma8(a, sn, KB[j+1] + 4, QB + 4, sn)
            a.nop(10 if j == 0 else 2)
        else:
            a.nop(4)
        for r in range(0, 16, 4):
            if j == 0 and r == 0:
                a(f"v_max_f32 v{mx[0]}, v{s}, v{s+1}")
                a(f"v_max_f32 v{mx[1]}, v{s+2}, v{s+3}")
            else:
                a(f"v_max3_f32 v{mx[0]}, v{mx[0]}, v{s+r}, v{s+r+1}")
                a(f"v_max3_f32 v{mx[1]}, v{mx[1]}, v{s+r+2}, v{s+r+3}")
    a(f"v_max_f32 v{T0}, v{mx[0]}, v{mx[1]}")
    a(f"v_mov_b32 v{T0+1}, v{T0}")
    a.nop(2)
    a(f"v_permlane32_swap_b32 v{T0}, v{T0+1}")
    a(f"v_max_f32 v{T0}, v{T0}, v{T0+1}")
    split_neg_max(a, T0, QB + 5, T0 + 2)
    a.nop(2)
    VBR = [16, 24]
    a(f"v_and_b32 v{T0+4}, 31, v0")
    a(f"v_lshrrev_b32 v{T0+5}, 5, v0")
    a(f"v_mul_u32_u24 v{T0+5}, 304, v{T0+5}")
    a(f"v_lshl_add_u32 v{T0+4}, v{T0+4}, 4, v{T0+5}")
    def read_vb(j):
        b_tile_index(a, j)
        a(f"s_sub_u32 s{sA}, s{sA}, s{sVt0}")
        a(f"s_mul_i32 s{sA}, s{sA}, 1216")
        a(f"s_add_u32 s{sA}, s{sA}, {VBL}")
        a(f"v_add_u32 v{T0+5}, s{sA}, v{T0+4}")
        a(f"ds_read_b128 {vr(VBR[j%2],4)}, v{T0+5}")
        a(f"ds_read_b128 {vr(VBR[j%2]+4,4)}, v{T0+5} offset:608")
    read_vb(0)
    mfma16(a, S_[0], KB[0], QB, cmask(0))
    mfma8(a, S_[0], KB[0] + 4, QB + 4, S_[0])
    a.nop(12)
    for j in range(9):
        s = S_[j % 2]; sn = S_[(j + 1) % 2]
        if j + 1 < 9:
            mfma16(a, sn, KB[j+1], QB, cmask(j + 1))
        exps(a, s, 0)
        if j + 1 < 9:
            mfma8(a, sn, KB[j+1] + 4, QB + 4, sn)
        exps(a, s, 4)
        if j > 0:
            mfma16(a, OB, VBR[(j-1)%2] + 4, P_ + 4, OB)
        exps(a, s, 8)
        a("s_waitcnt lgkmcnt(0)")
        mfma16(a, OB, VBR[j%2], P_, "0" if j == 0 else OB)
        if j + 1 < 9: read_vb(j + 1)
        exps(a, s, 12)
    a.nop(2)
    mfma16(a, OB, VBR[0] + 4, P_ + 4, OB)
    a.nop(12)
    normalize_store(a, OB, sOB, "OB", check=False)
    a("s_waitcnt lgkmcnt(0)")
    a("s_barrier")
    a(f"v_mov_b32 v{T0}, 49152")
    a(f"ds_read_b128 {vr(T0+1+0,4) if False else 'v[12:15]'}, v{T0}")
    a("s_waitcnt lgkmcnt(0)")
    a("v_or_b32 v12, v12, v13")
    a("v_or3_b32 v12, v12, v14, v15")
    a("s_nop 0")
    a(f"v_readfirstlane_b32 s{sA}, v12")
    a("s_nop 3")
    a(f"s_cmp_eq_u32 s{sA}, 0")
    a("s_cbranch_scc1 K2_FIN")
    a("s_waitcnt vmcnt(0)")
    a(f"s_mov_b32 s{sPass}, 1")
    for st in ST:
        a(f"v_mov_b32 v{st+5}, 0x3f803f80")
    for i in range(4):
        a(f"v_mov_b32 v{QA[i]+5}, 0")
        a(f"buffer_load_dwordx4 {vr(QA[i],4)}, v{vKm}, s[8:11], s{sQm} offen offset:{i*1024}")
        a(f"buffer_load_dword v{QA[i]+4}, v{vQr}, s[8:11], s{sQr} offen offset:{i*128}")
    mxs = [T0, T0 + 1, T0 + 2, T0 + 3]
    for i in range(4):
        a(f"v_mov_b32 v{mxs[i]}, 0xff7fffff")
    a(f"s_mov_b32 s{sA}, s{sKm[0]}")
    a(f"s_mov_b32 s{sB}, s{sKr}")
    a(f"s_mov_b32 s{sCmp}, 16")
    a.label("K2_FB_LOOP")
    a(f"buffer_load_dwordx4 {vr(ST[0],4)}, v{vKm}, s[8:11], s{sA} offen")
    a(f"buffer_load_dword v{ST[0]+4}, v{vKr}, s[8:11], s{sB} offen")
    a("s_waitcnt vmcnt(0)")
    for i in range(4):
        mfma16(a, S_[0], ST[0], QA[i], "0")
        mfma8(a, S_[0], ST[0] + 4, QA[i] + 4, S_[0])
        a.nop(12)
        for r in range(0, 16, 2):
            a(f"v_max3_f32 v{mxs[i]}, v{mxs[i]}, v{S_[0]+r}, v{S_[0]+r+1}")
    a(f"s_add_u32 s{sA}, s{sA}, 1024")
    a(f"s_add_u32 s{sB}, s{sB}, 128")
    a(f"s_sub_u32 s{sCmp}, s{sCmp}, 1")
    a(f"s_cmp_lg_u32 s{sCmp}, 0")
    a("s_cbranch_scc1 K2_FB_LOOP")
    for i in range(4):
        a(f"v_mov_b32 v{T0+4}, v{mxs[i]}")
        a.nop(2)
        a(f"v_permlane32_swap_b32 v{mxs[i]}, v{T0+4}")
        a(f"v_max_f32 v{mxs[i]}, v{mxs[i]}, v{T0+4}")
    a(f"s_lshl_b32 s{sA}, s{sW}, 10")
    a(f"v_add_u32 v{T0+4}, s{sA}, v{vKm}")
    a(f"v_mov_b32 v{S_[0]}, v{mxs[0]}")
    a(f"v_mov_b32 v{S_[0]+1}, v{mxs[1]}")
    a(f"v_mov_b32 v{S_[0]+2}, v{mxs[2]}")
    a(f"v_mov_b32 v{S_[0]+3}, v{mxs[3]}")
    a(f"ds_write_b128 v{T0+4}, {vr(S_[0],4)}")
    a("s_waitcnt lgkmcnt(0)")
    a("s_barrier")
    for ww in range(4):
        a(f"ds_read_b128 {vr(S_[1]+4*ww,4)}, v{vKm} offset:{ww*1024}")
    a("s_waitcnt lgkmcnt(0)")
    for i in range(4):
        a(f"v_max3_f32 v{mxs[i]}, v{S_[1]+i}, v{S_[1]+4+i}, v{S_[1]+8+i}")
        a(f"v_max_f32 v{mxs[i]}, v{mxs[i]}, v{S_[1]+12+i}")
    for i in range(4):
        split_neg_max(a, mxs[i], QA[i] + 5, T0 + 4)
    a("s_barrier")
    a("s_branch K2_A_START")
    a.label("K2_FIN")
    if diag: diag_end(a, 1, sW, 4, 16)
    a.label("K2_END")
    a("s_endpgm")
    return a.text()

K2_DESC = """
.amdhsa_kernel {name}
  .amdhsa_next_free_vgpr 248
  .amdhsa_next_free_sgpr 102
  .amdhsa_accum_offset 248
  .amdhsa_group_segment_fixed_size 0
  .amdhsa_kernarg_size 72
  .amdhsa_user_sgpr_count 2
  .amdhsa_user_sgpr_kernarg_segment_ptr 1
  .amdhsa_system_sgpr_workgroup_id_x 1
  .amdhsa_float_denorm_mode_32 3
.end_amdhsa_kernel
"""
K2_LAUNCH = f"grid=(512,1,1) block=(256,1,1) lds={VBL + 16384}"
```

```python
from asm import *
from layout import *
import os

OF = 0
ACC = 144
FW = [184, 204]
VL, VS, VS4 = 224, 225, 226
T = 228
sW, sBr, sMt, sNg = 3, 12, 13, 14
sA, sB, sC = 15, 16, 17
CH = WP_CH
NPC = 18 * CH // 1024
NQ = (NPC + 3) // 4
ROT = os.environ.get('K3ROT', '')
PD = int(os.environ.get('K3PD', '6'))
BS = int(os.environ.get('K3BS', '1'))
STB = os.environ.get('K3ST', '')

def acc(n, tt): return ACC + (n * 2 + tt) * 4

def gen_k3(name="proj_kernel", diag=False):
    a = Asm()
    a(f".p2align 8\n.type {name},@function")
    a.label(name)
    a("s_cmp_ge_u32 s2, 256")
    a("s_cbranch_scc1 K3_END")
    if diag: diag_start(a)
    a("s_load_dwordx2 s[10:11], s[0:1], 64")
    a("s_load_dwordx2 s[8:9], s[0:1], 48")
    a("v_lshrrev_b32 v1, 6, v0")
    a("v_and_b32 v0, 63, v0")
    a(f"v_readfirstlane_b32 s{sW}, v1")
    a(f"v_lshlrev_b32 v{VL}, 4, v0")
    a(f"s_bfe_u32 s{sBr}, s2, 0x10002")
    a(f"s_and_b32 s{sA}, s2, 3")
    a(f"s_lshl_b32 s{sA}, s{sA}, 2")
    a(f"s_bfe_u32 s{sMt}, s2, 0x20003")
    a(f"s_or_b32 s{sMt}, s{sMt}, s{sA}")
    a(f"s_lshr_b32 s{sNg}, s2, 5")
    sO, sOut, sWp, sM0, sT, sBlk = 30, 31, 32, 33, 34, 35
    a(f"s_lshl_b32 s{sBlk}, s{sMt}, 2")
    a(f"s_add_u32 s{sBlk}, s{sBlk}, s{sW}")
    a(f"s_mul_i32 s{sO}, s{sBlk}, {2*O_BLK}")
    a(f"s_mul_i32 s{sB}, s{sBr}, {O_BR}")
    a(f"s_add_u32 s{sO}, s{sO}, s{sB}")
    a(f"s_add_u32 s{sO}, s{sO}, {O_OFF}")
    a(f"s_lshl_b32 s{sB}, s{sBr}, 3")
    a(f"s_add_u32 s{sB}, s{sB}, s{sNg}")
    a(f"s_mul_i32 s{sWp}, s{sB}, {18*CH}")
    a(f"s_lshl_b32 s{sM0}, s{sW}, 10")
    a(f"s_add_u32 s{sWp}, s{sWp}, s{sM0}")
    a(f"s_add_u32 s{sWp}, s{sWp}, {WP_OFF}")
    sWl, sMl = 36, 37
    last = NPC - 1 - 4 * (NQ - 1)
    a(f"s_max_u32 s{sA}, s{sW}, {last}")
    a(f"s_sub_u32 s{sA}, s{sA}, {last}")
    a(f"s_lshl_b32 s{sA}, s{sA}, 10")
    a(f"s_sub_u32 s{sWl}, s{sWp}, s{sA}")
    a(f"s_sub_u32 s{sMl}, s{sM0}, s{sA}")
    sK, sU, sOc, sWb, sKl = 38, 39, 42, 43, 48
    if ROT:
        assert CH == 4608
        ra, rb = [int(x) for x in ROT.split(',')]
        a(f"s_bfe_u32 s{sA}, s2, 0x20003")
        a(f"s_mul_i32 s{sA}, s{sA}, {rb}")
        a(f"s_mul_i32 s{sB}, s{sNg}, {ra}")
        a(f"s_add_u32 s{sA}, s{sA}, s{sB}")
        a(f"s_mul_i32 s{sB}, s{sA}, 57")
        a(f"s_lshr_b32 s{sB}, s{sB}, 9")
        a(f"s_mul_i32 s{sB}, s{sB}, 9")
        a(f"s_sub_u32 s{sA}, s{sA}, s{sB}")
        a(f"s_lshl_b32 s{sOc}, s{sA}, 11")
        a(f"s_mul_i32 s{sA}, s{sA}, 9")
        a(f"s_add_u32 s{sKl}, s{sA}, {NPC - 1 - 4 * (NQ - 1)}")
        a(f"s_add_u32 s{sK}, s{sA}, s{sW}")
        a(f"s_sub_u32 s{sWb}, s{sWp}, s{sM0}")
    a("s_waitcnt lgkmcnt(0)")
    a("s_mov_b32 s24, s10")
    a("s_and_b32 s25, s11, 0xffff")
    a(f"s_mov_b32 s26, {WS_USED}")
    a("s_mov_b32 s27, 0x00020000")
    def wslot(q):
        base, m = (sWp, sM0) if q < NQ - 1 else (sWl, sMl)
        a(f"s_add_u32 m0, s{m}, {4096*q}")
        if ROT:
            a(f"s_add_u32 s{sT}, s{sK if q < NQ - 1 else sKl}, {4*q}")
            a(f"s_cmp_ge_u32 s{sT}, {NPC}")
            a(f"s_cselect_b32 s{sU}, {NPC}, 0")
            a(f"s_sub_u32 s{sT}, s{sT}, s{sU}")
            a(f"s_lshl_b32 s{sT}, s{sT}, 10")
            a(f"s_add_u32 s{sT}, s{sT}, s{sWb}")
        else:
            a(f"s_add_u32 s{sT}, s{base}, {4096*q}")
        a.vmem(f"buffer_load_dwordx4 v{VL}, s[24:27], s{sT} offen lds", f"w{q}")
    def oload(c, tt):
        if ROT:
            if tt == 0:
                a(f"s_add_u32 s{sO+10}, s{sO}, s{sOc}")
                a(f"s_add_u32 s{sO+11}, s{sO+10}, {O_BLK}")
                a(f"s_add_u32 s{sOc}, s{sOc}, 1024")
                a(f"s_cmp_eq_u32 s{sOc}, {18*1024}")
                a(f"s_cselect_b32 s{sOc}, 0, s{sOc}")
            a.vmem(f"buffer_load_dwordx4 {vr(OF + (c*2+tt)*4, 4)}, v{VL}, s[24:27], s{sO+10+tt} offen", f"o{c}")
            return
        off = c * 1024 + tt * O_BLK
        hi, lo = off & ~4095, off & 4095
        if lo == 0 or tt == 1 or c == 0:
            a(f"s_add_u32 s{sO+10+tt}, s{sO}, {hi}")
        a.vmem(f"buffer_load_dwordx4 {vr(OF + (c*2+tt)*4, 4)}, v{VL}, s[24:27], s{sO+10+tt} offen offset:{lo}", f"o{c}")
    qmax = lambda c: min(((CH * (c + 1) - 1) // 1024) // 4, NQ - 1)
    nq = [0]
    def group(c):
        out = []
        while nq[0] <= qmax(c):
            out.append(lambda q=nq[0]: wslot(q)); nq[0] += 1
        out.append(lambda: oload(c, 0)); out.append(lambda: oload(c, 1))
        return out
    for c in range(PD):
        for f in group(c): f()
    t = T
    a(f"v_bfe_u32 v{t}, v{VL}, 4, 4")
    a(f"v_lshrrev_b32 v{t+1}, 8, v{VL}")
    a(f"v_lshrrev_b32 v{t+2}, 1, v{t+1}")
    a(f"v_and_b32 v{t+3}, 1, v{t+1}")
    a(f"v_lshl_add_u32 v{t+4}, v{t+3}, 4, v{t}")
    a(f"v_mul_u32_u24 v{t+4}, 2304, v{t+4}")
    a(f"v_lshl_add_u32 v{VS}, v{t+2}, 4, v{t+4}")
    a(f"v_bfrev_b32 v{t+5}, 1")
    a(f"v_cmp_gt_u32 vcc, 0x200, v{VL}")
    a(f"v_cndmask_b32 v{VS4}, v{t+5}, v{VS}, vcc")
    a(f"s_mul_i32 s{sOut}, s{sBlk}, {32*2304}")
    a(f"s_mul_i32 s{sB}, s{sBr}, 1152")
    a(f"s_add_u32 s{sOut}, s{sOut}, s{sB}")
    a(f"s_mul_i32 s{sB}, s{sNg}, 144")
    a(f"s_add_u32 s{sOut}, s{sOut}, s{sB}")
    a("s_mov_b32 s44, s8")
    a("s_and_b32 s45, s9, 0xffff")
    a(f"s_mov_b32 s46, {S*1152*2}")
    a("s_mov_b32 s47, 0x00020000")
    VH = T + 6
    def rd1(c, n):
        off = c * CH + n * 1024
        half = n == 4 and CH != 5120
        lo, hi = (VH, VH + 1) if half else (VL, VL + 3)
        if off < 65536: return f"ds_read_b128 {vr(FW[c % 2] + 4*n, 4)}, v{lo} offset:{off}"
        return f"ds_read_b128 {vr(FW[c % 2] + 4*n, 4)}, v{hi} offset:{off - 61440}"
    def reads(c):
        return [rd1(c, n) for n in range(5)]
    a(f"v_add_u32 v{VL+3}, 61440, v{VL}")
    if CH != 5120:
        a(f"v_and_b32 v{VH}, 0x70, v{VL}")
        a(f"v_lshrrev_b32 v{VH+1}, 8, v{VL}")
        a(f"v_lshl_add_u32 v{VH}, v{VH+1}, 7, v{VH}")
        a(f"v_add_u32 v{VH+1}, 61440, v{VH}")
    def landed(c):
        a.wait_vm(f"w{qmax(c)}")
    landed(min(BS - 1, 17))
    a("s_barrier")
    if diag: diag_mark(a, 0)
    for r in reads(0): a(r)
    for c in range(18):
        pend = group(c + PD) if c + PD < 18 else []
        a.wait_vm(f"o{c}", "lgkmcnt(0)")
        if c + 1 < 18 and (c + 1) % BS == 0:
            landed(min(c + BS, 17))
            a("s_barrier")
        rd = reads(c + 1) if c + 1 < 18 else []
        k = 0
        for n in range(5):
            for tt in range(2):
                cc = "0" if c == 0 else vr(acc(n, tt), 4)
                a(f"v_mfma_f32_16x16x32_bf16 {vr(acc(n,tt),4)}, {vr(FW[c%2]+4*n,4)}, {vr(OF+(c*2+tt)*4,4)}, {cc}")
                if k < len(rd): a(rd[k]); k += 1
                if pend and (n * 2 + tt) % 2 == 1: pend.pop(0)()
        while pend: pend.pop(0)()
    if diag: diag_mark(a, 1)
    a.nop(8)
    for n in range(5):
        d = T + 4 * (n % 3)
        A = acc(n, 0); B = acc(n, 1)
        a(f"v_cvt_pk_bf16_f32 v{d}, v{A}, v{A+1}")
        a(f"v_cvt_pk_bf16_f32 v{d+1}, v{A+2}, v{A+3}")
        a(f"v_cvt_pk_bf16_f32 v{d+2}, v{B}, v{B+1}")
        a(f"v_cvt_pk_bf16_f32 v{d+3}, v{B+2}, v{B+3}")
        a.nop(2)
        a(f"v_permlane16_swap_b32 v{d}, v{d+2}")
        a(f"v_permlane16_swap_b32 v{d+1}, v{d+3}")
        a(f"buffer_store_dwordx4 {vr(d,4)}, v{VS if n < 4 else VS4}, s[44:47], s{sOut} offen offset:{n*32} {STB}")
    if diag:
        diag_mark(a, 2)
        a("s_waitcnt vmcnt(0)")
        a("s_mov_b32 s4, s24"); a("s_mov_b32 s5, s25")
        diag_end(a, 2, sW, 4, 16)
    a.label("K3_END")
    a("s_endpgm")
    return a.text()

K3_DESC = """
.amdhsa_kernel {name}
  .amdhsa_next_free_vgpr 240
  .amdhsa_next_free_sgpr 102
  .amdhsa_accum_offset 240
  .amdhsa_group_segment_fixed_size 0
  .amdhsa_kernarg_size 72
  .amdhsa_user_sgpr_count 2
  .amdhsa_user_sgpr_kernarg_segment_ptr 1
  .amdhsa_system_sgpr_workgroup_id_x 1
  .amdhsa_float_denorm_mode_32 3
.end_amdhsa_kernel
"""
K3_LAUNCH = f"grid=(256,1,1) block=(256,1,1) lds={18*CH}"
```

```python
from asm import *
from layout import *
import os

OF = 0
ACC = 144
FW = [184, 204]
VL, VS, VS4 = 224, 225, 226
T = 228
sW, sBr, sMt, sNg = 3, 12, 13, 14
sA, sB, sC = 15, 16, 17
CH = WP_CH
NPC = 18 * CH // 1024
NQ = (NPC + 3) // 4
ROT = os.environ.get('K3ROT', '')
PD = int(os.environ.get('K3PD', '6'))
BS = int(os.environ.get('K3BS', '1'))
TR = os.environ.get('K3TR', '1') == '1'
EPI = os.environ.get('K3EPI', '1') == '1'
STB = os.environ.get('K3ST', '')

def acc(n, tt): return ACC + (n * 2 + tt) * 4

def gen_k3(name="proj_kernel", diag=False):
    a = Asm()
    a(f".p2align 8\n.type {name},@function")
    a.label(name)
    a("s_cmp_ge_u32 s2, 256")
    a("s_cbranch_scc1 K3_END")
    if diag: diag_start(a)
    a("s_load_dwordx2 s[10:11], s[0:1], 64")
    a("s_load_dwordx2 s[8:9], s[0:1], 48")
    a("v_lshrrev_b32 v1, 6, v0")
    a("v_and_b32 v0, 63, v0")
    a(f"v_readfirstlane_b32 s{sW}, v1")
    a(f"v_lshlrev_b32 v{VL}, 4, v0")
    a(f"s_bfe_u32 s{sBr}, s2, 0x10002")
    a(f"s_and_b32 s{sA}, s2, 3")
    a(f"s_lshl_b32 s{sA}, s{sA}, 2")
    a(f"s_bfe_u32 s{sMt}, s2, 0x20003")
    a(f"s_or_b32 s{sMt}, s{sMt}, s{sA}")
    a(f"s_lshr_b32 s{sNg}, s2, 5")
    sO, sOut, sWp, sM0, sT, sBlk = 30, 31, 32, 33, 34, 35
    a(f"s_lshl_b32 s{sBlk}, s{sMt}, 2")
    a(f"s_add_u32 s{sBlk}, s{sBlk}, s{sW}")
    a(f"s_mul_i32 s{sO}, s{sBlk}, {2*O_BLK}")
    a(f"s_mul_i32 s{sB}, s{sBr}, {O_BR}")
    a(f"s_add_u32 s{sO}, s{sO}, s{sB}")
    a(f"s_add_u32 s{sO}, s{sO}, {O_OFF}")
    a(f"s_lshl_b32 s{sB}, s{sBr}, 3")
    a(f"s_add_u32 s{sB}, s{sB}, s{sNg}")
    a(f"s_mul_i32 s{sWp}, s{sB}, {18*CH}")
    a(f"s_lshl_b32 s{sM0}, s{sW}, 10")
    a(f"s_add_u32 s{sWp}, s{sWp}, s{sM0}")
    a(f"s_add_u32 s{sWp}, s{sWp}, {WP_OFF}")
    sWl, sMl = 36, 37
    last = NPC - 1 - 4 * (NQ - 1)
    a(f"s_max_u32 s{sA}, s{sW}, {last}")
    a(f"s_sub_u32 s{sA}, s{sA}, {last}")
    a(f"s_lshl_b32 s{sA}, s{sA}, 10")
    a(f"s_sub_u32 s{sWl}, s{sWp}, s{sA}")
    a(f"s_sub_u32 s{sMl}, s{sM0}, s{sA}")
    sK, sU, sOc, sWb, sKl = 38, 39, 42, 43, 48
    if ROT:
        assert CH == 4608
        ra, rb = [int(x) for x in ROT.split(',')]
        a(f"s_bfe_u32 s{sA}, s2, 0x20003")
        a(f"s_mul_i32 s{sA}, s{sA}, {rb}")
        a(f"s_mul_i32 s{sB}, s{sNg}, {ra}")
        a(f"s_add_u32 s{sA}, s{sA}, s{sB}")
        a(f"s_mul_i32 s{sB}, s{sA}, 57")
        a(f"s_lshr_b32 s{sB}, s{sB}, 9")
        a(f"s_mul_i32 s{sB}, s{sB}, 9")
        a(f"s_sub_u32 s{sA}, s{sA}, s{sB}")
        a(f"s_lshl_b32 s{sOc}, s{sA}, 11")
        a(f"s_mul_i32 s{sA}, s{sA}, 9")
        a(f"s_add_u32 s{sKl}, s{sA}, {NPC - 1 - 4 * (NQ - 1)}")
        a(f"s_add_u32 s{sK}, s{sA}, s{sW}")
        a(f"s_sub_u32 s{sWb}, s{sWp}, s{sM0}")
    a("s_waitcnt lgkmcnt(0)")
    a("s_mov_b32 s24, s10")
    a("s_and_b32 s25, s11, 0xffff")
    a(f"s_mov_b32 s26, {WS_USED}")
    a("s_mov_b32 s27, 0x00020000")
    def wslot(q):
        base, m = (sWp, sM0) if q < NQ - 1 else (sWl, sMl)
        a(f"s_add_u32 m0, s{m}, {4096*q}")
        if ROT:
            a(f"s_add_u32 s{sT}, s{sK if q < NQ - 1 else sKl}, {4*q}")
            a(f"s_cmp_ge_u32 s{sT}, {NPC}")
            a(f"s_cselect_b32 s{sU}, {NPC}, 0")
            a(f"s_sub_u32 s{sT}, s{sT}, s{sU}")
            a(f"s_lshl_b32 s{sT}, s{sT}, 10")
            a(f"s_add_u32 s{sT}, s{sT}, s{sWb}")
        else:
            a(f"s_add_u32 s{sT}, s{base}, {4096*q}")
        a.vmem(f"buffer_load_dwordx4 v{VL}, s[24:27], s{sT} offen lds", f"w{q}")
    def oload(c, tt):
        if ROT:
            if tt == 0:
                a(f"s_add_u32 s{sO+10}, s{sO}, s{sOc}")
                a(f"s_add_u32 s{sO+11}, s{sO+10}, {O_BLK}")
                a(f"s_add_u32 s{sOc}, s{sOc}, 1024")
                a(f"s_cmp_eq_u32 s{sOc}, {18*1024}")
                a(f"s_cselect_b32 s{sOc}, 0, s{sOc}")
            a.vmem(f"buffer_load_dwordx4 {vr(OF + (c*2+tt)*4, 4)}, v{VL}, s[24:27], s{sO+10+tt} offen", f"o{c}")
            return
        off = c * 1024 + tt * O_BLK
        hi, lo = off & ~4095, off & 4095
        if lo == 0 or tt == 1 or c == 0:
            a(f"s_add_u32 s{sO+10+tt}, s{sO}, {hi}")
        a.vmem(f"buffer_load_dwordx4 {vr(OF + (c*2+tt)*4, 4)}, v{VL}, s[24:27], s{sO+10+tt} offen offset:{lo}", f"o{c}")
    qmax = lambda c: min(((CH * (c + 1) - 1) // 1024) // 4, NQ - 1)
    nq = [0]
    def group(c):
        out = []
        while nq[0] <= qmax(c):
            out.append(lambda q=nq[0]: wslot(q)); nq[0] += 1
        out.append(lambda: oload(c, 0)); out.append(lambda: oload(c, 1))
        return out
    for c in range(PD):
        for f in group(c): f()
    t = T
    if not TR:
        a(f"v_bfe_u32 v{t}, v{VL}, 4, 4")
        a(f"v_lshrrev_b32 v{t+1}, 8, v{VL}")
        a(f"v_lshrrev_b32 v{t+2}, 1, v{t+1}")
        a(f"v_and_b32 v{t+3}, 1, v{t+1}")
        a(f"v_lshl_add_u32 v{t+4}, v{t+3}, 4, v{t}")
        a(f"v_mul_u32_u24 v{t+4}, 2304, v{t+4}")
        a(f"v_lshl_add_u32 v{VS}, v{t+2}, 4, v{t+4}")
        a(f"v_bfrev_b32 v{t+5}, 1")
        a(f"v_cmp_gt_u32 vcc, 0x200, v{VL}")
        a(f"v_cndmask_b32 v{VS4}, v{t+5}, v{VS}, vcc")
    a(f"s_mul_i32 s{sOut}, s{sBlk}, {32*2304}")
    a(f"s_mul_i32 s{sB}, s{sBr}, 1152")
    a(f"s_add_u32 s{sOut}, s{sOut}, s{sB}")
    a(f"s_mul_i32 s{sB}, s{sNg}, 144")
    a(f"s_add_u32 s{sOut}, s{sOut}, s{sB}")
    a("s_mov_b32 s44, s8")
    a("s_and_b32 s45, s9, 0xffff")
    a(f"s_mov_b32 s46, {S*1152*2}")
    a("s_mov_b32 s47, 0x00020000")
    VH = T + 6
    def rd1(c, n):
        off = c * CH + n * 1024
        half = n == 4 and CH != 5120
        lo, hi = (VH, VH + 1) if half else (VL, VL + 3)
        if off < 65536: return f"ds_read_b128 {vr(FW[c % 2] + 4*n, 4)}, v{lo} offset:{off}"
        return f"ds_read_b128 {vr(FW[c % 2] + 4*n, 4)}, v{hi} offset:{off - 61440}"
    def reads(c):
        return [rd1(c, n) for n in range(5)]
    a(f"v_add_u32 v{VL+3}, 61440, v{VL}")
    if CH != 5120:
        a(f"v_and_b32 v{VH}, 0x70, v{VL}")
        a(f"v_lshrrev_b32 v{VH+1}, 8, v{VL}")
        a(f"v_lshl_add_u32 v{VH}, v{VH+1}, 7, v{VH}")
        a(f"v_add_u32 v{VH+1}, 61440, v{VH}")
    def landed(c):
        a.wait_vm(f"w{qmax(c)}")
    GO, LWA, LRA = 240, 245, 246
    def tr_setup():
        a(f"s_mul_i32 s{sA}, s{sW}, 4608")
        a(f"v_bfe_u32 v{t}, v{VL}, 4, 4")
        a(f"v_lshrrev_b32 v{t+1}, 8, v{VL}")
        a(f"v_mul_u32_u24 v{t}, 144, v{t}")
        a(f"v_lshl_add_u32 v{t}, v{t+1}, 3, v{t}")
        a(f"v_add_u32 v{LWA}, s{sA}, v{t}")
        a(f"v_add_u32 v{LRA}, s{sA}, v{VL}")
        for i in range(5):
            a(f"v_lshrrev_b32 v{t}, 4, v{VL}")
            a(f"v_add_u32 v{t}, {64*i}, v{t}")
            a(f"v_mul_u32_u24 v{t+1}, 7282, v{t}")
            a(f"v_lshrrev_b32 v{t+1}, 16, v{t+1}")
            a(f"v_mul_u32_u24 v{t+1}, 2160, v{t+1}")
            a(f"v_lshl_add_u32 v{GO+i}, v{t}, 4, v{t+1}")
        a(f"v_bfrev_b32 v{t}, 1")
        a(f"v_cmp_gt_u32 vcc, 0x200, v{VL}")
        a(f"v_cndmask_b32 v{GO+4}, v{t}, v{GO+4}, vcc")
        a("s_mov_b32 s50, -1")
        a("s_mov_b32 s51, 0")
    def finish_tr(n):
        d = T + 4 * (n % 3)
        for tt in range(2):
            A = acc(n, tt)
            a(f"v_cvt_pk_bf16_f32 v{d+2*tt}, v{A}, v{A+1}")
            a(f"v_cvt_pk_bf16_f32 v{d+2*tt+1}, v{A+2}, v{A+3}")
        if n == 4: a("s_mov_b64 exec, s[50:51]")
        for tt in range(2):
            a(f"ds_write_b64 v{LWA}, {vr(d+2*tt,2)} offset:{tt*2304 + n*32}")
        if n == 4: a("s_mov_b64 exec, -1")
    def finish(n):
        if TR: return finish_tr(n)
        d = T + 4 * (n % 3)
        A = acc(n, 0); B = acc(n, 1)
        a(f"v_cvt_pk_bf16_f32 v{d}, v{A}, v{A+1}")
        a(f"v_cvt_pk_bf16_f32 v{d+1}, v{A+2}, v{A+3}")
        a(f"v_cvt_pk_bf16_f32 v{d+2}, v{B}, v{B+1}")
        a(f"v_cvt_pk_bf16_f32 v{d+3}, v{B+2}, v{B+3}")
        a.nop(2)
        a(f"v_permlane16_swap_b32 v{d}, v{d+2}")
        a(f"v_permlane16_swap_b32 v{d+1}, v{d+3}")
        a(f"buffer_store_dwordx4 {vr(d,4)}, v{VS if n < 4 else VS4}, s[44:47], s{sOut} offen offset:{n*32} {STB}")
    landed(min(BS - 1, 17))
    a("s_barrier")
    if diag: diag_mark(a, 0)
    for r in reads(0): a(r)
    for c in range(18):
        pend = group(c + PD) if c + PD < 18 else []
        a.wait_vm(f"o{c}", "lgkmcnt(0)")
        if c + 1 < 18 and (c + 1) % BS == 0:
            landed(min(c + BS, 17))
            a("s_barrier")
        rd = reads(c + 1) if c + 1 < 18 else []
        k = 0
        for n in range(5):
            for tt in range(2):
                cc = "0" if c == 0 else vr(acc(n, tt), 4)
                a(f"v_mfma_f32_16x16x32_bf16 {vr(acc(n,tt),4)}, {vr(FW[c%2]+4*n,4)}, {vr(OF+(c*2+tt)*4,4)}, {cc}")
                if k < len(rd): a(rd[k]); k += 1
                if pend and (n * 2 + tt) % 2 == 1: pend.pop(0)()
            if EPI and c == 17 and n >= 1: finish(n - 1)
        while pend: pend.pop(0)()
        if TR and c == 8: tr_setup()
    if diag: diag_mark(a, 1)
    a.nop(8)
    for n in range(4 if EPI else 0, 5): finish(n)
    if TR:
        a("s_waitcnt lgkmcnt(0)")
        for i in range(5):
            a(f"ds_read_b128 {vr(4*i,4)}, v{LRA} offset:{i*1024}")
        for i in range(5):
            a(f"s_waitcnt lgkmcnt({4-i})")
            a(f"buffer_store_dwordx4 {vr(4*i,4)}, v{GO+i}, s[44:47], s{sOut} offen {STB}")
    if diag:
        diag_mark(a, 2)
        a("s_waitcnt vmcnt(0)")
        a("s_mov_b32 s4, s24"); a("s_mov_b32 s5, s25")
        diag_end(a, 2, sW, 4, 16)
    a.label("K3_END")
    a("s_endpgm")
    return a.text()

K3_DESC = """
.amdhsa_kernel {name}
  .amdhsa_next_free_vgpr 248
  .amdhsa_next_free_sgpr 102
  .amdhsa_accum_offset 248
  .amdhsa_group_segment_fixed_size 0
  .amdhsa_kernarg_size 72
  .amdhsa_user_sgpr_count 2
  .amdhsa_user_sgpr_kernarg_segment_ptr 1
  .amdhsa_system_sgpr_workgroup_id_x 1
  .amdhsa_float_denorm_mode_32 3
.end_amdhsa_kernel
"""
K3_LAUNCH = f"grid=(256,1,1) block=(256,1,1) lds={18*CH}"
```
